```python
import torch

def _softmax(x, axis=-1):
    return torch.softmax(x, dim=axis)

def _gelu(x):
    return torch.nn.functional.gelu(x, approximate='tanh')

def _silu(x):
    return torch.nn.functional.silu(x)

def _sigmoid(x):
    return torch.sigmoid(x)

def _layernorm(x, axis=-1, eps=1e-05):
    m = x.mean(dim=axis, keepdim=True)
    v = x.var(dim=axis, keepdim=True, unbiased=False)
    return (x - m) / torch.sqrt(v + eps)

def _scatter_add(tgt, idx, src, axis=0):
    return tgt.clone().index_add_(axis, idx, src)

def _segment_sum(src, seg, n):
    out = torch.zeros((n,) + src.shape[1:], dtype=src.dtype)
    return out.index_add_(0, seg, src)

def _pad(x, pw):
    flat = tuple((v for pair in reversed(pw) for v in pair))
    return torch.nn.functional.pad(x, flat)
kernel_name = 'standalone__pixart__diffusion'

def setup_inputs():

    _w = lambda a: (lambda t: t.to(torch.bfloat16) if t.is_floating_point() else t)(torch.as_tensor(a))
    B, N, D, M = (2, 1024, 1152, 77)
    return {'x': _w((lambda *s: torch.randn(*s, dtype=torch.bfloat16) * 0.05)(B, N, D)), 'c': _w((lambda *s: torch.randn(*s, dtype=torch.bfloat16) * 0.05)(B, D)), 'y': _w((lambda *s: torch.randn(*s, dtype=torch.bfloat16) * 0.1)(B, M, D)), 'wqkv': _w((lambda *s: torch.randn(*s, dtype=torch.bfloat16) * 0.05)(D, 3 * D)), 'wo': _w((lambda *s: torch.randn(*s, dtype=torch.bfloat16) * 0.05)(D, D)), 'wq_c': _w((lambda *s: torch.randn(*s, dtype=torch.bfloat16) * 0.1)(D, D)), 'wkv_c': _w((lambda *s: torch.randn(*s, dtype=torch.bfloat16) * 0.1)(D, 2 * D)), 'wo_c': _w((lambda *s: torch.randn(*s, dtype=torch.bfloat16) * 0.05)(D, D)), 'w_mod': _w((lambda *s: torch.randn(*s, dtype=torch.bfloat16) * 0.05)(D, 6 * D))}

def reference(x, c, y, wqkv, wo, wq_c, wkv_c, wo_c, w_mod):
    B, N, D = x.shape
    mod = (_silu(c) @ w_mod).reshape(B, 6, 1, D)
    shift_a, scale_a, gate_a, shift_m, scale_m, gate_m = [mod[:, i] for i in range(6)]
    h = _layernorm(x, axis=-1) * (1 + scale_a) + shift_a
    qkv = h @ wqkv
    q, k, v = (qkv[..., :D].clone(), qkv[..., D:2 * D].clone(), qkv[..., 2 * D:].clone())
    p = _softmax(torch.einsum('bqd,bkd->bqk', q, k) * D ** (-0.5), axis=-1)
    x = x + gate_a * (torch.einsum('bqk,bkd->bqd', p, v) @ wo)
    hc = _layernorm(x, axis=-1)
    qc = hc @ wq_c
    kvc = y @ wkv_c
    kc, vc = (kvc[..., :D].clone(), kvc[..., D:].clone())
    pc = _softmax(torch.einsum('bqd,bkd->bqk', qc, kc) * D ** (-0.5), axis=-1)
    return x + torch.einsum('bqk,bkd->bqd', pc, vc) @ wo_c
```

```python
D = 1152
class Asm:
    def __init__(self):
        self.L = []
    def __call__(self, s):
        self.L.append("    " + s)
    def label(self, l):
        self.L.append(l + ":")
    def raw(self, s):
        self.L.append(s)
    def text(self):
        return "\n".join(self.L) + "\n"

def vr(base, n=1):
    return f"v{base}" if n == 1 else f"v[{base}:{base+n-1}]"
def sr(base, n=1):
    return f"s{base}" if n == 1 else f"s[{base}:{base+n-1}]"

class VAlloc:
    def __init__(self, start):
        self.n = start; self.hi = start
    def __call__(self, k=1, align=1):
        self.n = (self.n + align - 1) // align * align
        r = self.n; self.n += k; self.hi = max(self.hi, self.n)
        return r

class Lgkm:
    def __init__(self, A):
        self.A = A; self.q = []
    def issue(self, tag):
        self.q.append(tag)
    def need(self, tag):
        if tag in self.q:
            i = len(self.q) - 1 - self.q[::-1].index(tag)
            n = min(len(self.q) - 1 - i, 15)
            self.A(f"s_waitcnt lgkmcnt({n})")
            self.q = self.q[len(self.q) - n:] if n else []
    def clear(self):
        self.q = []

P_X, P_C, P_Y, P_WQKV, P_WO, P_WQC, P_WKVC, P_WOC, P_WMOD, P_OUT, P_DBG, P_WS = 36, 38, 40, 42, 44, 46, 48, 50, 52, 54, 56, 58
S_W = 3
S_T = 4
S_TM, S_TN = 5, 6
S_ROT = 7
SRD_M, SRD_N, SRD_O, SRD_E, SRD_F = 8, 12, 16, 20, 24
V_LANE, V_R, V_G = 0, 1, 2
WS_BYTES = 64 << 20

def srd(A, d, ptr, size, off=0):
    if off:
        A(f"s_add_u32 s{d}, s{ptr}, {off}")
        A(f"s_addc_u32 s{d+1}, s{ptr+1}, 0")
    else:
        A(f"s_mov_b32 s{d}, s{ptr}")
        A(f"s_mov_b32 s{d+1}, s{ptr+1}")
    A(f"s_mov_b32 s{d+2}, {size}")
    A(f"s_mov_b32 s{d+3}, 0x20000")

def sdiv(A, q, x, c, tmp=None):
    if c & (c - 1) == 0:
        A(f"s_lshr_b32 s{q}, s{x}, {c.bit_length() - 1}")
    else:
        A(f"s_mul_hi_u32 s{q}, s{x}, {-(-(1 << 32) // c)}")
def sdivmod(A, q, r, x, c):
    if c & (c - 1) == 0:
        A(f"s_lshr_b32 s{q}, s{x}, {c.bit_length() - 1}")
        A(f"s_and_b32 s{r}, s{x}, {c - 1}")
    else:
        A(f"s_mul_hi_u32 s{q}, s{x}, {-(-(1 << 32) // c)}")
        A(f"s_mul_i32 s35, s{q}, {c}")
        A(f"s_sub_u32 s{r}, s{x}, s35")

def xcd_linear(A, dst, t, cnt, start):
    q, rem = divmod(cnt, 8)
    A(f"s_and_b32 s33, s{t}, 7")
    A(f"s_lshr_b32 s34, s{t}, 3")
    A(f"s_mul_i32 s32, s33, {q}")
    if rem:
        A(f"s_min_u32 s33, s33, {rem}")
        A("s_add_u32 s32, s32, s33")
    A(f"s_add_u32 s{dst}, s32, s34")

class Op:
    def __init__(self, kind, R, srd, tile_sgpr, *, S=None, ld=None, base=0, native=False, extra_sgpr=None):
        self.kind = kind; self.R = R; self.srd = srd; self.tile = tile_sgpr
        self.S = S
        self.ld = ld
        self.base = base
        self.native = native
        self.extra = extra_sgpr
        self.bytes = R * 128
        self.pieces = R // 8
        self.kstep = {"fm": 2048, "rm": 128, "km": 64 * (ld or 0)}[kind]

    def loader_setup(self, A, va, NL, s_lw, s_m0, ldsoff):
        self.NL = NL; self.ldsoff = ldsoff; self.s_m0 = s_m0
        cnt = self.pieces // NL; assert cnt * NL == self.pieces
        self.cnt = cnt
        self.voff = [va() for _ in range(cnt)]
        v0 = self.voff[0]; t = va.tmp
        if self.kind == "fm":
            A(f"s_mul_i32 s28, s{self.tile}, {self.R // 16 * self.S}")
            A(f"s_and_b32 s29, s{s_lw}, 1")
            A(f"s_lshl_b32 s29, s29, 10")
            A(f"s_lshr_b32 s30, s{s_lw}, 1")
            A(f"s_mul_i32 s31, s30, {cnt * self.S}")
            A("s_add_u32 s28, s28, s31")
            A("s_add_u32 s28, s28, s29")
            if self.base: A(f"s_add_u32 s28, s28, {self.base}")
            if self.extra is not None: A(f"s_add_u32 s28, s28, s{self.extra}")
            A(f"v_lshl_add_u32 v{v0}, v{V_LANE}, 4, s28")
            A(f"s_mul_i32 s30, s30, {cnt * 2048}")
            A(f"s_add_u32 s{s_m0}, s30, s29")
            if ldsoff: A(f"s_add_u32 s{s_m0}, s{s_m0}, {ldsoff}")
            self.imm = [(i & 1) * 2048 for i in range(cnt)]
            self.m0add = [(i & ~1) * 2048 for i in range(cnt)]
            step = self.S
        else:
            if self.kind == "rm":
                rpp, lpr = 8, 8
            else:
                lpr = self.R // 8; rpp = 64 // lpr
            sh = lpr.bit_length() - 1
            A(f"v_lshrrev_b32 v{t}, {sh}, v{V_LANE}")
            A(f"v_and_b32 v{t+1}, {lpr - 1}, v{V_LANE}")
            if self.kind == "rm":
                A(f"s_and_b32 s29, s{s_lw}, 1")
                A("s_lshl_b32 s29, s29, 2")
                A(f"v_add_u32 v{t+2}, s29, v{V_G}")
            elif self.R == 128:
                assert NL == 4
                if self.native: A(f"s_and_b32 s29, s{s_lw}, 1")
                else: A(f"s_bfe_u32 s29, s{s_lw}, 0x10001")
                A("s_lshl_b32 s29, s29, 3")
                A(f"v_lshl_add_u32 v{t+2}, v{V_G}, 1, s29")
            else:
                assert self.R == 64
                if self.native:
                    A(f"v_lshlrev_b32 v{t+2}, 1, v{V_G}")
                else:
                    A(f"s_and_b32 s29, s{s_lw}, 1")
                    A("s_lshl_b32 s29, s29, 2")
                    A(f"v_and_b32 v{t+2}, 1, v{V_G}")
                    A(f"v_lshl_add_u32 v{t+2}, v{t+2}, 1, s29")
            A(f"v_xor_b32 v{t+1}, v{t+1}, v{t+2}")
            A(f"v_mul_u32_u24 v{t}, {self.ld}, v{t}")
            A(f"v_lshl_add_u32 v{t}, v{t+1}, 4, v{t}")
            tile_stride = getattr(self, "tile_stride", None)
            if tile_stride is None:
                tile_stride = self.R * self.ld if self.kind == "rm" else self.R * 2
            A(f"s_mul_i32 s28, s{self.tile}, {tile_stride}")
            A(f"s_mul_i32 s29, s{s_lw}, {rpp * self.ld}")
            A("s_add_u32 s28, s28, s29")
            if self.base: A(f"s_add_u32 s28, s28, {self.base}")
            if self.extra is not None: A(f"s_add_u32 s28, s28, s{self.extra}")
            A(f"v_add_u32 v{v0}, s28, v{t}")
            A(f"s_lshl_b32 s{s_m0}, s{s_lw}, 10")
            if ldsoff: A(f"s_add_u32 s{s_m0}, s{s_m0}, {ldsoff}")
            per = 4 // NL
            self.imm = [(i % per) * NL * 1024 for i in range(cnt)]
            self.m0add = [(i - i % per) * NL * 1024 for i in range(cnt)]
            step = NL * rpp * self.ld
        for i in range(1, cnt):
            A(f"v_add_u32 v{self.voff[i]}, {i * step - self.imm[i]}, v{v0}")

    def issue(self, A, s_k):
        last = None
        for i in range(self.cnt):
            if self.m0add[i] != last:
                A(f"s_add_u32 m0, s{self.s_m0}, {self.m0add[i]}")
                A("s_nop 0")
                last = self.m0add[i]
            A(f"buffer_load_dwordx4 v{self.voff[i]}, s[{self.srd}:{self.srd+3}], s{s_k} offen offset:{self.imm[i]} lds")

    def consumer_setup(self, A, va, nfr, s_wi, ldsoff):
        self.nfr = nfr; t = va.tmp
        def add_wave(reg, mul, const):
            if s_wi is not None:
                A(f"s_mul_i32 s28, s{s_wi}, {mul}")
                if const: A(f"s_add_u32 s28, s28, {const}")
                A(f"v_add_u32 v{reg}, s28, v{reg}")
            elif const:
                A(f"v_add_u32 v{reg}, {const}, v{reg}")
        if self.kind == "fm":
            self.rd = [va()]
            A(f"v_lshlrev_b32 v{self.rd[0]}, 4, v{V_LANE}")
            add_wave(self.rd[0], nfr * 2048, ldsoff)
        elif self.kind == "rm":
            A(f"v_lshrrev_b32 v{t}, 1, v{V_R}")
            A(f"v_lshlrev_b32 v{t+1}, 7, v{V_R}")
            add_wave(t + 1, nfr * 2048, ldsoff)
            if not self.native:
                self.rd = [va(), va()]
                A(f"v_xor_b32 v{t}, v{t}, v{V_G}")
                A(f"v_lshl_add_u32 v{self.rd[0]}, v{t}, 4, v{t+1}")
                A(f"v_xor_b32 v{self.rd[1]}, 64, v{self.rd[0]}")
            else:
                self.rd = [va() for _ in range(4)]
                A(f"v_lshrrev_b32 v{t+2}, 1, v{V_G}")
                A(f"v_xor_b32 v{t}, v{t}, v{t+2}")
                A(f"v_lshl_add_u32 v{t+1}, v{t}, 4, v{t+1}")
                A(f"v_and_b32 v{t+2}, 1, v{V_G}")
                A(f"v_lshl_add_u32 v{self.rd[0]}, v{t+2}, 3, v{t+1}")
                for j in range(1, 4):
                    A(f"v_xor_b32 v{self.rd[j]}, {32 * j}, v{self.rd[0]}")
        else:
            pitch = self.R * 2
            self.rd = [va() for _ in range(nfr)]
            A(f"v_bfe_u32 v{t}, v{V_LANE}, 2, 2")
            A(f"v_and_b32 v{t+1}, 1, v{V_G}")
            if self.R == 128:
                A(f"v_lshl_add_u32 v{t+1}, v{t+1}, 2, v{t}")
            else:
                A(f"v_lshrrev_b32 v{t+2}, 1, v{t}")
                A(f"v_lshl_add_u32 v{t+1}, v{t+1}, 1, v{t+2}")
            A(f"v_lshl_add_u32 v{t}, v{V_G}, {2 if self.native else 3}, v{t}")
            A(f"v_lshlrev_b32 v{t}, {pitch.bit_length() - 1}, v{t}")
            A(f"v_and_b32 v{t+2}, 3, v{V_LANE}")
            A(f"v_lshl_add_u32 v{t}, v{t+2}, 3, v{t}")
            if ldsoff: A(f"v_add_u32 v{t}, {ldsoff}, v{t}")
            if s_wi is not None:
                assert nfr & (nfr - 1) == 0
                A(f"s_mul_i32 s28, s{s_wi}, {nfr}")
                A(f"v_xor_b32 v{t+1}, s28, v{t+1}")
            for f in range(nfr):
                A(f"v_xor_b32 v{t+2}, {f}, v{t+1}")
                A(f"v_lshl_add_u32 v{self.rd[f]}, v{t+2}, 5, v{t}")

    def reads(self, dst, f, kk):
        if self.kind == "fm":
            return [f"ds_read_b128 {vr(dst, 4)}, v{self.rd[0]} offset:{f * 2048 + kk * 1024}"]
        if self.kind == "rm":
            if not self.native:
                return [f"ds_read_b128 {vr(dst, 4)}, v{self.rd[kk]} offset:{f * 2048}"]
            return [f"ds_read_b64 {vr(dst + 2 * hh, 2)}, v{self.rd[2 * kk + hh]} offset:{f * 2048}" for hh in range(2)]
        pitch = self.R * 2
        hs = 16 if self.native else 4
        return [f"ds_read_b64_tr_b16 {vr(dst + 2 * hh, 2)}, v{self.rd[f]} offset:{(32 * kk + hs * hh) * pitch}" for hh in range(2)]

class Gemm:
    def __init__(self, name, opM, opN, WM, WN, n, NS, NL):
        self.name = name; self.M = opM; self.N = opN; self.WM = WM; self.WN = WN
        self.a = opM.R // 16 // WM; self.b = opN.R // 16 // WN
        self.n = n; self.NS = NS; self.NL = NL
        self.stage = opM.bytes + opN.bytes
        self.lds = self.stage * NS
        self.vhi = 0

    def emit_split(self, A):
        A(f"s_cmp_ge_u32 s{S_W}, 4")
        A(f"s_cbranch_scc1 L_{self.name}_ld")
        if self.WM * self.WN < 4:
            A(f"s_cmp_ge_u32 s{S_W}, {self.WM * self.WN}")
            A(f"s_cbranch_scc1 L_{self.name}_end")

    def emit_loader(self, A, after=None, before=None):
        nm = self.name; NS = self.NS; n = self.n; NL = self.NL
        A.label(f"L_{nm}_ld")
        if NL < 4:
            A(f"s_cmp_ge_u32 s{S_W}, {4 + NL}")
            A(f"s_cbranch_scc1 L_{nm}_end")
        va = VAlloc(8); va.tmp = 4
        A(f"s_sub_u32 s60, s{S_W}, 4")
        self.M.loader_setup(A, va, NL, 60, 61, 0)
        self.N.loader_setup(A, va, NL, 60, 62, self.M.bytes)
        self.lva = va
        A(f"s_mul_i32 s63, s{S_ROT}, {self.M.kstep}")
        A(f"s_mul_i32 s64, s{S_ROT}, {self.N.kstep}")
        A(f"s_mov_b32 s65, s{S_ROT}")
        A("s_mov_b32 s66, 0")
        A("s_mov_b32 s67, 0")
        ops = self.M.cnt + self.N.cnt
        self.ops = ops
        if before: before(A)
        def issue():
            self.M.issue(A, 63); self.N.issue(A, 64)
            A(f"s_add_u32 s63, s63, {self.M.kstep}")
            A(f"s_add_u32 s64, s64, {self.N.kstep}")
            A("s_add_u32 s65, s65, 1")
            A(f"s_cmp_eq_u32 s65, {n}")
            A("s_cselect_b32 s63, 0, s63")
            A("s_cselect_b32 s64, 0, s64")
            A("s_cselect_b32 s65, 0, s65")
            A("s_add_u32 s66, s66, 1")
            A(f"s_cmp_eq_u32 s66, {NS}")
            A(f"s_cselect_b32 s68, {(-(NS - 1) * self.stage) & 0xffffffff}, s69")
            A("s_cselect_b32 s66, 0, s66")
            A("s_add_u32 s61, s61, s68")
            A("s_add_u32 s62, s62, s68")
            A("s_add_u32 s67, s67, 1")
        A(f"s_mov_b32 s69, {self.stage}")
        A.label(f"L_{nm}_pro")
        issue()
        A(f"s_cmp_lt_u32 s67, {NS}")
        A(f"s_cbranch_scc1 L_{nm}_pro")
        A(f"s_waitcnt vmcnt({(NS - 1) * ops})")
        A("s_barrier")
        A.label(f"L_{nm}_lloop")
        A(f"s_waitcnt vmcnt({(NS - 2) * ops})")
        A("s_barrier")
        issue()
        A(f"s_cmp_lt_u32 s67, {n}")
        A(f"s_cbranch_scc1 L_{nm}_lloop")
        extra = 0
        if after: extra = after(A) or 0
        for rho in range(n - NS + 1, n):
            A(f"s_waitcnt vmcnt({min(63, (n - 1 - rho) * ops + extra)})")
            A("s_barrier")
        self.vhi = max(self.vhi, va.hi)

    def emit_consumer(self, A, va, pre=None, nhook=None):
        nm = self.name; a, b = self.a, self.b
        s_wm = s_wn = None
        if self.WM > 1 and self.WN > 1:
            A(f"s_and_b32 s60, s{S_W}, 1"); A(f"s_lshr_b32 s61, s{S_W}, 1"); s_wm, s_wn = 60, 61
        elif self.WM > 1: s_wm = S_W
        else: s_wn = S_W
        self.s_wm, self.s_wn = s_wm, s_wn
        self.M.consumer_setup(A, va, a, s_wm, 0)
        self.N.consumer_setup(A, va, b, s_wn, self.M.bytes)
        fb = va(8 * (a + b), 4)
        accb = va(4 * a * b, 4)
        self.fb = fb; self.accb = accb
        mf = lambda kk, i: fb + 4 * (kk * (a + b) + i)
        nf = lambda kk, f: fb + 4 * (kk * (a + b) + a + f)
        self.acc = lambda i, f: accb + 4 * (i * b + f)
        for j in range(4 * a * b): A(f"v_mov_b32 v{accb + j}, 0")
        A("s_mov_b32 s66, 0"); A("s_mov_b32 s67, 0")
        A(f"s_mov_b32 s69, {self.stage}")
        if pre: pre(A)
        T = Lgkm(A)
        if a >= b: order = [(i, f) for i in range(a) for f in range(b)]
        else: order = [(i, f) for f in range(b) for i in range(a)]
        def readlist(kk):
            seen = []; out = []
            for (i, f) in order:
                for tag in (("m", kk, i), ("n", kk, f)):
                    if tag not in seen:
                        seen.append(tag)
                        ins = self.M.reads(mf(kk, i), i, kk) if tag[0] == "m" else self.N.reads(nf(kk, f), f, kk)
                        out += [(tag, x) for x in ins]
            return out
        def phase(kk_mfma, kk_read, extra_reads=()):
            rd = list(extra_reads) + (readlist(kk_read) if kk_read is not None else [])
            nmf = len(order)
            per = -(-len(rd) // max(1, (nmf * 2) // 3))
            ri = 0
            hooked = set()
            for (i, f) in order:
                T.need(("m", kk_mfma, i)); T.need(("n", kk_mfma, f))
                if nhook and f not in hooked:
                    hooked.add(f); nhook(A, T, nf(kk_mfma, f), f, kk_mfma)
                A(f"v_mfma_f32_16x16x32_bf16 {vr(self.acc(i, f), 4)}, {vr(mf(kk_mfma, i), 4)}, {vr(nf(kk_mfma, f), 4)}, {vr(self.acc(i, f), 4)}")
                for _ in range(per):
                    if ri < len(rd):
                        A(rd[ri][1]); T.issue(rd[ri][0]); ri += 1
            assert ri == len(rd)
        xr = getattr(self, "step_reads", lambda: [])
        A("s_barrier")
        for tag, x in list(xr()) + readlist(0):
            A(x); T.issue(tag)
        state0 = list(T.q)
        A.label(f"L_{nm}_cloop")
        phase(0, 1)
        A("s_add_u32 s67, s67, 1")
        A(f"s_cmp_eq_u32 s67, {self.n}")
        A(f"s_cbranch_scc1 L_{nm}_ctail")
        stateA = list(T.q)
        A("s_add_u32 s66, s66, 1")
        A(f"s_cmp_eq_u32 s66, {self.NS}")
        A(f"s_cselect_b32 s68, {(-(self.NS - 1) * self.stage) & 0xffffffff}, s69")
        A("s_cselect_b32 s66, 0, s66")
        for r in self.M.rd + self.N.rd:
            A(f"v_add_u32 v{r}, s68, v{r}")
        if hasattr(self, "step_adv"): self.step_adv(A)
        A("s_waitcnt lgkmcnt(0)")
        A("s_barrier")
        T.clear()
        phase(1, 0, xr())
        assert T.q == state0, (T.q, state0)
        A(f"s_branch L_{nm}_cloop")
        A.label(f"L_{nm}_ctail")
        T.q = stateA
        phase(1, None)
        self.vhi = max(self.vhi, va.hi)

    def epi_fm(self, A, va, dst_off, KBt, s_nblk0, s_kb0, srdo=SRD_O):
        a, b = self.a, self.b
        assert a % 2 == 0
        t = va.tmp
        A(f"s_mov_b32 s28, s{s_nblk0}")
        if self.s_wn is not None:
            A(f"s_mul_i32 s29, s{self.s_wn}, {b}"); A("s_add_u32 s28, s28, s29")
        A(f"s_mul_i32 s28, s28, {KBt}")
        A(f"s_add_u32 s28, s28, s{s_kb0}")
        if self.s_wm is not None:
            A(f"s_mul_i32 s29, s{self.s_wm}, {a // 2}"); A("s_add_u32 s28, s28, s29")
        A("s_lshl_b32 s28, s28, 10")
        A(f"s_add_u32 s28, s28, {dst_off}")
        A(f"v_lshlrev_b32 v{t}, 4, v{V_LANE}")
        A("s_nop 4")
        k = 0
        for f in range(b):
            for q in range(a // 2):
                d = self.fb + 4 * (k % (2 * (a + b))); k += 1
                r0, r1 = self.acc(2 * q, f), self.acc(2 * q + 1, f)
                A(f"v_cvt_pk_bf16_f32 v{d}, v{r0}, v{r0+1}")
                A(f"v_cvt_pk_bf16_f32 v{d+1}, v{r0+2}, v{r0+3}")
                A(f"v_cvt_pk_bf16_f32 v{d+2}, v{r1}, v{r1+1}")
                A(f"v_cvt_pk_bf16_f32 v{d+3}, v{r1+2}, v{r1+3}")
                A(f"buffer_store_dwordx4 {vr(d, 4)}, v{t}, s[{srdo}:{srdo+3}], s28 offen offset:{q * 1024}")
            if f < b - 1: A(f"s_add_u32 s28, s28, {KBt * 1024}")

    def epi_k16(self, A, va, dst_off, KT, s_nblk0, s_kt0, srdo=SRD_O, wm_stride=None):
        a, b = self.a, self.b
        t = va.tmp
        A(f"s_mov_b32 s28, s{s_nblk0}")
        if self.s_wn is not None:
            A(f"s_mul_i32 s29, s{self.s_wn}, {b}"); A("s_add_u32 s28, s28, s29")
        A(f"s_mul_i32 s28, s28, {KT}")
        if s_kt0 is not None: A(f"s_add_u32 s28, s28, s{s_kt0}")
        if self.s_wm is not None:
            A(f"s_mul_i32 s29, s{self.s_wm}, {a if wm_stride is None else wm_stride}"); A("s_add_u32 s28, s28, s29")
        A("s_lshl_b32 s28, s28, 9")
        A(f"s_add_u32 s28, s28, {dst_off}")
        A(f"v_lshlrev_b32 v{t}, 3, v{V_LANE}")
        A("s_nop 4")
        for f in range(b):
            for i in range(a):
                r0 = self.acc(i, f)
                A(f"v_cvt_pk_bf16_f32 v{r0}, v{r0}, v{r0+1}")
                A(f"v_cvt_pk_bf16_f32 v{r0+1}, v{r0+2}, v{r0+3}")
                A(f"buffer_store_dwordx2 {vr(r0, 2)}, v{t}, s[{srdo}:{srdo+3}], s28 offen offset:{i * 512}")
            if f < b - 1: A(f"s_add_u32 s28, s28, {KT * 512}")

def kernel_prologue(A, name, nwg):
    A.raw(f".globl {name}\n.p2align 8\n.type {name},@function\n{name}:")
    A("s_load_dwordx16 s[36:51], s[0:1], 0")
    A("s_load_dwordx8 s[52:59], s[0:1], 64")
    A("v_lshrrev_b32 v3, 6, v0")
    A(f"v_and_b32 v{V_LANE}, 63, v0")
    A(f"v_readfirstlane_b32 s{S_W}, v3")
    A(f"v_and_b32 v{V_R}, 15, v{V_LANE}")
    A(f"v_lshrrev_b32 v{V_G}, 4, v{V_LANE}")

def kernel_desc(name, vgpr, sgpr=96):
    acc = (vgpr + 3) // 4 * 4
    return f'''.amdhsa_kernel {name}
  .amdhsa_next_free_vgpr {acc}
  .amdhsa_next_free_sgpr {sgpr}
  .amdhsa_accum_offset {acc}
  .amdhsa_group_segment_fixed_size 0
  .amdhsa_kernarg_size 96
  .amdhsa_user_sgpr_count 2
  .amdhsa_user_sgpr_kernarg_segment_ptr 1
  .amdhsa_system_sgpr_workgroup_id_x 1
.end_amdhsa_kernel
'''
```

```python
from core import *
from layout import *

def job_A(A, start, cnt=162):
    nm = "jA"
    A.label(f"L_{nm}")
    A(f"s_sub_u32 s{S_T}, s2, {start}")
    xcd_linear(A, S_T, S_T, cnt, start)
    sdivmod(A, 30, 31, S_T, 54)
    sdivmod(A, S_TN, S_TM, 31, 3)
    A("s_mul_i32 s30, s30, 3")
    A(f"s_add_u32 s{S_TM}, s{S_TM}, s30")
    A(f"s_lshl_b32 s30, s{S_TM}, 1")
    A(f"s_add_u32 s30, s30, s{S_TN}")
    A("s_sub_u32 s31, s30, 18")
    A("s_cmp_ge_u32 s30, 18")
    A(f"s_cselect_b32 s{S_ROT}, s31, s30")
    A("s_waitcnt lgkmcnt(0)")
    srd(A, SRD_M, P_WQKV, 1152 * 6912)
    srd(A, SRD_O, P_WS, WS_USED)
    g = Gemm(nm, Op("rm", 128, SRD_M, S_TM, ld=6912), Op("rm", 64, SRD_M, S_TN, ld=6912, base=2304), 2, 2, 18, 3, 4)
    g.emit_split(A)
    va = VAlloc(8); va.tmp = 4
    g.emit_consumer(A, va)
    A(f"s_lshl_b32 s30, s{S_TN}, 2"); A(f"s_lshl_b32 s31, s{S_TM}, 2")
    g.epi_fm(A, va, AT, 36, 30, 31)
    A("s_endpgm")
    g.emit_loader(A)
    A.label(f"L_{nm}_end")
    A("s_endpgm")
    return g

def job_kv(A, start, cnt=72):
    nm = "jkv"
    A.label(f"L_{nm}")
    A(f"s_sub_u32 s{S_T}, s2, {start}")
    xcd_linear(A, S_T, S_T, cnt, start)
    sdivmod(A, S_TM, S_TN, S_T, 2)
    A(f"s_lshr_b32 s30, s{S_TM}, 1")
    A(f"s_mul_i32 s31, s{S_TN}, 9")
    A("s_add_u32 s30, s30, s31")
    A("s_sub_u32 s31, s30, 18")
    A("s_cmp_ge_u32 s30, 18")
    A(f"s_cselect_b32 s{S_ROT}, s31, s30")
    A("s_waitcnt lgkmcnt(0)")
    srd(A, SRD_M, P_WKVC, 1152 * 4608)
    srd(A, SRD_N, P_Y, 154 * 2304)
    srd(A, SRD_O, P_WS, WS_USED)
    opN = Op("rm", 80, SRD_N, S_TN, ld=2304); opN.tile_stride = 77 * 2304
    g = Gemm(nm, Op("km", 64, SRD_M, S_TM, ld=4608), opN, 2, 1, 18, 4, 2)
    g.emit_split(A)
    va = VAlloc(8); va.tmp = 4
    g.emit_consumer(A, va)
    A(f"s_mul_i32 s30, s{S_TN}, 5"); A(f"s_lshl_b32 s31, s{S_TM}, 1")
    g.epi_fm(A, va, KV, 72, 30, 31)
    A("s_endpgm")
    g.emit_loader(A)
    A.label(f"L_{nm}_end")
    A("s_endpgm")
    return g

def xlane_sum_bits2345(A, v, t):
    A("s_nop 1")
    A(f"v_add_f32_dpp v{v}, v{v}, v{v} row_ror:4 row_mask:0xf bank_mask:0xf")
    A("s_nop 1")
    A(f"v_add_f32_dpp v{v}, v{v}, v{v} row_ror:8 row_mask:0xf bank_mask:0xf")
    A(f"v_mov_b32 v{t}, v{v}")
    A("s_nop 1")
    A(f"v_permlane16_swap_b32 v{v}, v{t}")
    A(f"v_add_f32 v{v}, v{v}, v{t}")
    A(f"v_mov_b32 v{t}, v{v}")
    A("s_nop 1")
    A(f"v_permlane32_swap_b32 v{v}, v{t}")
    A(f"v_add_f32 v{v}, v{v}, v{t}")

def job_ln(A):
    A.label("L_jln")
    A(f"s_lshl_b32 s5, s{S_T}, 3")
    A(f"s_add_u32 s5, s5, s{S_W}")
    A(f"v_and_b32 v4, 1, v{V_G}")
    A("v_lshlrev_b32 v4, 1, v4")
    A(f"v_and_b32 v5, 2, v{V_G}")
    A("v_lshl_or_b32 v4, v5, 2, v4")
    A(f"v_xor_b32 v4, v4, v{V_R}")
    A(f"v_mul_u32_u24 v5, 2304, v{V_G}")
    A("v_lshl_add_u32 v4, v4, 4, v5")
    A("s_mul_i32 s6, s5, 9216")
    A(f"s_mul_i32 s7, s{S_W}, 9216")
    A("s_waitcnt lgkmcnt(0)")
    srd(A, SRD_M, P_X, 2048 * 2304)
    srd(A, SRD_O, P_WS, WS_USED)
    for it in range(9):
        A(f"s_add_u32 m0, s7, {it * 1024}")
        A(f"s_add_u32 s28, s6, {it * 256}")
        A(f"buffer_load_dwordx4 v4, s[{SRD_M}:{SRD_M+3}], s28 offen lds")
    A(f"v_and_b32 v4, 3, v{V_LANE}")
    A("v_and_b32 v5, 1, v4")
    A("v_lshlrev_b32 v5, 1, v5")
    A("v_and_b32 v6, 2, v4")
    A("v_lshl_or_b32 v5, v6, 2, v5")
    A(f"v_bfe_u32 v6, v{V_LANE}, 3, 1")
    A(f"v_lshl_add_u32 v6, v{V_G}, 2, v6")
    A("v_xor_b32 v5, v5, v6")
    A("v_lshlrev_b32 v5, 4, v5")
    A("v_lshl_add_u32 v5, v4, 8, v5")
    A(f"v_bfe_u32 v6, v{V_LANE}, 2, 1")
    A("v_lshl_add_u32 v5, v6, 3, v5")
    A("v_add_u32 v5, s7, v5")
    A("v_xor_b32 v6, 32, v5")
    A(f"v_bfe_u32 v7, v{V_LANE}, 2, 2")
    A("v_lshl_add_u32 v7, v7, 4, v4")
    A("s_and_b32 s28, s5, 3")
    A("s_lshl_b32 s28, s28, 2")
    A("v_add_u32 v7, s28, v7")
    A("v_lshlrev_b32 v7, 4, v7")
    A(f"v_lshl_add_u32 v7, v{V_G}, 10, v7")
    A("s_lshr_b32 s28, s5, 2")
    A(f"s_mul_i32 s28, s28, {36 * 1024}")
    if XN: A(f"s_add_u32 s28, s28, {XN}")
    PK = 84; F = 12
    A("s_mov_b32 s30, 0xffff0000")
    for it in range(9):
        A(f"s_waitcnt vmcnt({8 - it})")
        A(f"ds_read_b64 {vr(PK + 4 * it, 2)}, v5 offset:{it * 1024}")
        A(f"ds_read_b64 {vr(PK + 4 * it + 2, 2)}, v6 offset:{it * 1024}")
    A("v_mov_b32 v8, 0"); A("v_mov_b32 v9, 0")
    for it in range(9):
        A(f"s_waitcnt lgkmcnt({min(15, 16 - 2 * it)})")
        for j in range(4):
            p = PK + 4 * it + j; f = F + 8 * it + 2 * j
            A(f"v_lshlrev_b32 v{f}, 16, v{p}")
            A(f"v_and_b32 v{f+1}, s30, v{p}")
            A(f"v_pk_add_f32 v[8:9], v[8:9], {vr(f, 2)}")
    A("v_add_f32 v8, v8, v9")
    xlane_sum_bits2345(A, 8, 9)
    A(f"v_mul_f32 v8, {-1.0 / D!r}, v8")
    A("v_mov_b32 v9, v8")
    A("v_mov_b32 v10, 0"); A("v_mov_b32 v11, 0")
    for j in range(36):
        f = F + 2 * j
        A(f"v_pk_add_f32 {vr(f, 2)}, {vr(f, 2)}, v[8:9]")
        A(f"v_pk_fma_f32 v[10:11], {vr(f, 2)}, {vr(f, 2)}, v[10:11]")
    A("v_add_f32 v10, v10, v11")
    xlane_sum_bits2345(A, 10, 11)
    A("v_mov_b32 v11, 0x3727c5ac")
    A(f"v_fmac_f32 v11, {1.0 / D!r}, v10")
    A("v_rsq_f32 v10, v11")
    A("s_nop 0")
    A("v_mov_b32 v11, v10")
    for it in range(9):
        for j in range(4):
            p = PK + 4 * it + j; f = F + 8 * it + 2 * j
            A(f"v_pk_mul_f32 {vr(f, 2)}, {vr(f, 2)}, v[10:11]")
            A(f"v_cvt_pk_bf16_f32 v{p}, v{f}, v{f+1}")
        A(f"buffer_store_dwordx4 {vr(PK + 4 * it, 4)}, v7, s[{SRD_O}:{SRD_O+3}], s28 offen")
        if it < 8: A("s_add_u32 s28, s28, 4096")
    A("s_endpgm")
    return 120

def job_mod(A):
    A.label("L_jmod")
    A(f"v_lshrrev_b32 v4, 3, v{V_LANE}")
    A("v_mul_u32_u24 v4, 13824, v4")
    A(f"v_and_b32 v5, 7, v{V_LANE}")
    A("v_lshl_add_u32 v4, v5, 4, v4")
    A(f"s_mul_i32 s28, s{S_W}, {144 * 13824}")
    A(f"s_lshl_b32 s29, s{S_T}, 7")
    A("s_add_u32 s28, s28, s29")
    A(f"v_min_u32 v6, 35, v{V_LANE}")
    A("v_lshlrev_b32 v7, 3, v6")
    A(f"s_mul_i32 s29, s{S_W}, 288")
    A("s_waitcnt lgkmcnt(0)")
    srd(A, SRD_M, P_WMOD, 1152 * 13824)
    srd(A, SRD_N, P_C, 2 * 2304)
    srd(A, SRD_O, P_WS, WS_USED)
    A(f"buffer_load_dwordx2 v[8:9], v7, s[{SRD_N}:{SRD_N+3}], s29 offen")
    A(f"buffer_load_dwordx2 v[10:11], v7, s[{SRD_N}:{SRD_N+3}], s29 offen offset:2304")
    W = 48
    for it in range(18):
        A(f"buffer_load_dwordx4 {vr(W + 4 * it, 4)}, v4, s[{SRD_M}:{SRD_M+3}], s28 offen")
        if it < 17: A(f"s_add_u32 s28, s28, {8 * 13824}")
    A("s_mov_b32 s30, 0xffff0000")
    A("s_waitcnt vmcnt(18)")
    for b in range(2):
        for j in range(2):
            A(f"v_lshlrev_b32 v{12 + 4 * j + b}, 16, v{8 + 2 * b + j}")
            A(f"v_and_b32 v{12 + 4 * j + 2 + b}, s30, v{8 + 2 * b + j}")
    for j in range(8):
        A(f"v_mul_f32 v{20 + j}, {-1.4426950408889634!r}, v{12 + j}")
    for j in range(8): A(f"v_exp_f32 v{20 + j}, v{20 + j}")
    for j in range(8): A(f"v_add_f32 v{20 + j}, 1.0, v{20 + j}")
    for j in range(8): A(f"v_rcp_f32 v{20 + j}, v{20 + j}")
    for j in range(8): A(f"v_mul_f32 v{12 + j}, v{12 + j}, v{20 + j}")
    for j in range(4):
        A(f"v_cvt_pk_bf16_f32 v20, v{12 + 2 * j}, v{13 + 2 * j}")
        A(f"v_lshlrev_b32 v{12 + 2 * j}, 16, v20")
        A(f"v_and_b32 v{13 + 2 * j}, s30, v20")
    A(f"s_mul_i32 s31, s{S_W}, 1152")
    A("s_add_u32 s31, s31, 4096")
    A("v_lshl_add_u32 v6, v6, 5, s31")
    A("ds_write_b128 v6, v[12:15]")
    A("ds_write_b128 v6, v[16:19] offset:16")
    A(f"v_lshrrev_b32 v7, 3, v{V_LANE}")
    A("v_lshl_add_u32 v7, v7, 3, s31")
    ACC = 24
    for j in range(16): A(f"v_mov_b32 v{ACC + j}, 0")
    A("s_waitcnt lgkmcnt(0)")
    A("ds_read_b64 v[8:9], v7")
    for it in range(18):
        sp = 8 + 2 * (it % 2)
        if it < 17: A(f"ds_read_b64 {vr(8 + 2 * ((it + 1) % 2), 2)}, v7 offset:{(it + 1) * 64}")
        A(f"s_waitcnt vmcnt({17 - it}) lgkmcnt({1 if it < 17 else 0})")
        for j in range(4):
            u = 40 + 2 * j
            A(f"v_lshlrev_b32 v{u}, 16, v{W + 4 * it + j}")
            A(f"v_and_b32 v{u+1}, s30, v{W + 4 * it + j}")
        for j in range(4):
            u = 40 + 2 * j; a0 = ACC + 4 * j
            A(f"v_pk_fma_f32 {vr(a0, 2)}, {vr(u, 2)}, {vr(sp, 2)}, {vr(a0, 2)} op_sel:[0,0,0] op_sel_hi:[0,1,1]")
            A(f"v_pk_fma_f32 {vr(a0 + 2, 2)}, {vr(u, 2)}, {vr(sp, 2)}, {vr(a0 + 2, 2)} op_sel:[1,0,0] op_sel_hi:[1,1,1]")
    A("s_nop 1")
    for j in range(8):
        A(f"v_permlane32_swap_b32 v{ACC + j}, v{ACC + 8 + j}")
    for j in range(8):
        A(f"v_add_f32 v{ACC + j}, v{ACC + j}, v{ACC + 8 + j}")
    A("s_nop 1")
    for j in range(4):
        A(f"v_permlane16_swap_b32 v{ACC + j}, v{ACC + 4 + j}")
    for j in range(4):
        A(f"v_add_f32 v{ACC + j}, v{ACC + j}, v{ACC + 4 + j}")
    A("s_nop 1")
    for j in range(4):
        A(f"v_add_f32_dpp v{ACC + j}, v{ACC + j}, v{ACC + j} row_ror:8 row_mask:0xf bank_mask:0xf")
    A("v_lshlrev_b32 v5, 6, v5")
    A(f"v_lshl_add_u32 v5, v{V_G}, 4, v5")
    A(f"s_lshl_b32 s31, s{S_W}, 9")
    A("v_add_u32 v5, s31, v5")
    A(f"ds_write_b128 v5, {vr(ACC, 4)}")
    A("s_waitcnt lgkmcnt(0)")
    A("s_barrier")
    A(f"s_cmp_ge_u32 s{S_W}, 2")
    A("s_cbranch_scc1 L_jmod_end")
    A(f"s_lshl_b32 s31, s{S_W}, 2")
    A(f"v_lshl_add_u32 v5, v{V_LANE}, 3, s31")
    for w in range(8): A(f"ds_read_b32 v{8 + w}, v5 offset:{w * 512}")
    A("s_waitcnt lgkmcnt(0)")
    for w in range(1, 8): A(f"v_add_f32 v8, v8, v{8 + w}")
    A("v_cvt_pk_bf16_f32 v8, v8, v8")
    A("v_and_b32 v8, s30, v8")
    A(f"s_sub_u32 s31, s{S_T}, 18")
    A("s_cmp_lt_u32 s31, 18")
    A("s_cselect_b32 s31, 1.0, 0")
    A("v_add_f32 v8, s31, v8")
    A("v_cvt_pk_bf16_f32 v8, v8, v8")
    A("v_and_b32 v8, s30, v8")
    A(f"s_mul_i32 s28, s{S_W}, {3456 * 4}")
    A(f"s_lshl_b32 s29, s{S_T}, 8")
    A("s_add_u32 s28, s28, s29")
    A(f"s_add_u32 s28, s28, {MOD}")
    A(f"v_lshlrev_b32 v5, 2, v{V_LANE}")
    A(f"buffer_store_dword v8, v5, s[{SRD_O}:{SRD_O+3}], s28 offen")
    A.label("L_jmod_end")
    A("s_endpgm")
    return 120

def kernel0(A):
    name = "k0_kernel"; nwg = 352
    kernel_prologue(A, name, nwg)
    A("s_cmp_lt_u32 s2, 22");  A("s_cbranch_scc1 L_k0_light0")
    A("s_cmp_lt_u32 s2, 94");  A("s_cbranch_scc1 L_jkv")
    A("s_cmp_lt_u32 s2, 256"); A("s_cbranch_scc1 L_jA")
    A(f"s_cmp_ge_u32 s2, {nwg}"); A("s_cbranch_scc1 L_k0_end")
    A("s_sub_u32 s2, s2, 234")
    A.label("L_k0_light0")
    A(f"s_mov_b32 s{S_T}, s2")
    A("s_cmp_lt_u32 s2, 54"); A("s_cbranch_scc1 L_jmod")
    A(f"s_sub_u32 s{S_T}, s2, 54")
    v1 = job_ln(A)
    v2 = job_mod(A)
    gA = job_A(A, 94)
    gk = job_kv(A, 22)
    A.label("L_k0_end")
    A("s_endpgm")
    v = max(v1, v2, gA.vhi, gk.vhi)
    assert v <= 128
    lds = max(gA.lds, gk.lds, 8 * 9216)
    return dict(name=name, grid=nwg, block=512, lds=lds, vgpr=v)
```

```python
MB = 1 << 20
XN   = 0 * MB
H    = 5 * MB
AT   = 10 * MB
BMT  = 13 * MB
KV   = 16 * MB
TT   = 17 * MB
UT   = 22 * MB
PP   = 27 * MB
WKT  = 32 * MB
VOT  = 33 * MB
MOD  = 33 * MB + 524288
ML   = 34 * MB + 65536
ST   = 34 * MB + 393216
CS   = 34 * MB + 524288
X1F  = 35 * MB
SCP  = 40 * MB
WS_USED = 48 * MB
CLOG = 1152 ** -0.5 * 1.4426950408889634
```

```python
import sys, importlib
from core import *
import k0
def build(kernels, out):
    A = Asm()
    infos = [k(A) for k in kernels]
    hdr = open("standalone__pixart__diffusion.s.ref").read().split("\n")
    hdr = [l for l in hdr if l.startswith(";") and "@launch" not in l and "Override" not in l and "grid=ceil" not in l][:13]
    txt = "\n".join(hdr) + "\n"
    for i in infos:
        txt += f"; @launch kernel={i['name']} grid=({i['grid']},1,1) block=({i['block']},1,1) lds={i['lds']}\n"
    txt += '.amdgcn_target "amdgcn-amd-amdhsa--gfx950"\n.text\n' + A.text()
    txt += '.section .rodata,"a"\n'
    for i in infos:
        txt += ".p2align 6\n" + kernel_desc(i["name"], i["vgpr"])
    open(out, "w").write(txt)
    for i in infos: print(i)
if __name__ == "__main__":
    ks = []
    for m in os.environ.get("KS", "k0,k1,k2,k3,k4").split(","):
        try:
            mod = importlib.import_module(m); ks.append(getattr(mod, "kernel" + m[1]))
        except ModuleNotFoundError:
            break
    build(ks, sys.argv[1] if len(sys.argv) > 1 else "full.s")
```

```python
from core import *
from layout import *

def mod18(A, dst, src):
    A(f"s_sub_u32 s31, s{src}, 18")
    A(f"s_cmp_ge_u32 s{src}, 18")
    A(f"s_cselect_b32 s{dst}, s31, s{src}")

def job_T(A, start, cnt=144):
    nm = "jT"; n = 18; NS = 4
    A.label(f"L_{nm}")
    A(f"s_sub_u32 s{S_T}, s2, {start}")
    xcd_linear(A, S_T, S_T, cnt, start)
    sdivmod(A, S_TN, S_TM, S_T, 9)
    A(f"s_mov_b32 s{S_ROT}, 0")
    A("s_waitcnt lgkmcnt(0)")
    srd(A, SRD_O, P_WS, WS_USED)
    opM = Op("fm", 128, SRD_O, S_TM, S=36864, base=AT)
    opN = Op("fm", 128, SRD_O, S_TN, S=36864, base=XN)
    g = Gemm(nm, opM, opN, 2, 2, n, NS, 4)
    TB = g.lds
    g.lds += 12288
    g.emit_split(A)
    va = VAlloc(8); va.tmp = 4
    g.emit_consumer(A, va, pre=lambda A: A("s_barrier"))
    A(f"s_lshl_b32 s30, s{S_TN}, 3"); A(f"s_lshl_b32 s31, s{S_TM}, 2")
    g.epi_fm(A, va, TT, 36, 30, 31)
    A("s_endpgm")
    A.label(f"L_{nm}_ld")
    va = VAlloc(8); va.tmp = 4
    A(f"s_sub_u32 s60, s{S_W}, 4")
    A(f"s_lshr_b32 s28, s{S_TN}, 3")
    A(f"s_mul_i32 s28, s28, {3456 * 4}")
    A("s_mul_i32 s29, s60, 3072")
    A("s_add_u32 s28, s28, s29")
    A(f"s_add_u32 s28, s28, {MOD}")
    A(f"s_add_u32 m0, s29, {TB}")
    A(f"v_lshlrev_b32 v4, 4, v{V_LANE}")
    for i in range(3):
        A(f"buffer_load_dwordx4 v4, s[{SRD_O}:{SRD_O+3}], s28 offen offset:{i * 1024} lds")
    opM.loader_setup(A, va, 4, 60, 61, 0)
    vx = [va() for _ in range(4)]
    A(f"s_lshl_b32 s28, s{S_TN}, 3")
    A("s_lshr_b32 s29, s60, 1")
    A("s_lshl_b32 s30, s29, 2")
    A("s_add_u32 s28, s28, s30")
    A("s_mul_i32 s28, s28, 36864")
    A("s_and_b32 s30, s60, 1")
    A("s_lshl_b32 s31, s30, 10")
    A("s_add_u32 s28, s28, s31")
    A(f"v_lshl_add_u32 v{vx[0]}, v{V_LANE}, 4, s28")
    for i in range(1, 4): A(f"v_add_u32 v{vx[i]}, {i * 36864}, v{vx[0]}")
    vw = va()
    A("s_lshl_b32 s29, s29, 13")
    A("s_add_u32 s29, s29, s31")
    A(f"s_add_u32 s29, s29, {opM.bytes}")
    A(f"v_lshl_add_u32 v{vw}, v{V_LANE}, 4, s29")
    vt = va()
    A("s_lshl_b32 s30, s30, 7")
    A(f"s_add_u32 s30, s30, {TB}")
    A(f"v_lshl_add_u32 v{vt}, v{V_G}, 4, s30")
    X = [va(16, 4), va(16, 4)]
    O = va(16, 4); TS = va(16, 4); U = va(8, 2)
    A("s_mov_b32 s63, 0")
    A(f"s_mov_b32 s64, {XN}")
    A(f"s_mov_b32 s70, {H}")
    A("s_mov_b32 s66, 0")
    A("s_mov_b32 s67, 0")
    A("s_mov_b32 s65, 0")
    A(f"s_mov_b32 s69, {g.stage}")
    A("s_mov_b32 s71, 0xffff0000")
    wrap = (-(NS - 1) * g.stage) & 0xffffffff
    def issueM():
        opM.issue(A, 63)
        A("s_add_u32 s63, s63, 2048")
        A("s_add_u32 s66, s66, 1")
        A(f"s_cmp_eq_u32 s66, {NS}")
        A(f"s_cselect_b32 s68, {wrap}, s69")
        A("s_cselect_b32 s66, 0, s66")
        A("s_add_u32 s61, s61, s68")
    def issueX(s):
        for i in range(4):
            A(f"buffer_load_dwordx4 {vr(X[s] + 4 * i, 4)}, v{vx[i]}, s[{SRD_O}:{SRD_O+3}], s64 offen")
        A("s_add_u32 s64, s64, 2048")
    issueM(); issueX(0); issueM(); issueX(1)
    A("s_waitcnt vmcnt(16)")
    A("s_barrier")
    A.label(f"L_{nm}_lloop")
    for s in range(2):
        for q, off in enumerate((4608, 4608 + 64, 0, 64)):
            A(f"ds_read_b128 {vr(TS + 4 * q, 4)}, v{vt} offset:{off + s * 256}")
        A("s_cmp_eq_u32 s65, 8")
        A(f"s_cbranch_scc1 L_{nm}_t{s}")
        issueM()
        A("s_waitcnt vmcnt(12)")
        A(f"s_branch L_{nm}_u{s}")
        A.label(f"L_{nm}_t{s}")
        A(f"s_waitcnt vmcnt({8 if s == 0 else 0})")
        A.label(f"L_{nm}_u{s}")
        A("s_waitcnt lgkmcnt(0)")
        for i in range(4):
            for d in range(4):
                A(f"v_lshlrev_b32 v{U + 2 * d}, 16, v{X[s] + 4 * i + d}")
                A(f"v_and_b32 v{U + 2 * d + 1}, s71, v{X[s] + 4 * i + d}")
            for d in range(4):
                A(f"v_pk_fma_f32 {vr(U + 2 * d, 2)}, {vr(U + 2 * d, 2)}, {vr(TS + 2 * d, 2)}, {vr(TS + 8 + 2 * d, 2)}")
            for d in range(4):
                A(f"v_cvt_pk_bf16_f32 v{O + 4 * i + d}, v{U + 2 * d}, v{U + 2 * d + 1}")
            A(f"ds_write_b128 v{vw}, {vr(O + 4 * i, 4)} offset:{i * 2048}")
        A("s_cmp_eq_u32 s65, 8")
        A(f"s_cbranch_scc1 L_{nm}_v{s}")
        issueX(s)
        A.label(f"L_{nm}_v{s}")
        A(f"s_cmp_lg_u32 s65, s{S_TM}")
        A(f"s_cbranch_scc1 L_{nm}_w{s}")
        for i in range(4):
            A(f"buffer_store_dwordx4 {vr(O + 4 * i, 4)}, v{vx[i]}, s[{SRD_O}:{SRD_O+3}], s70 offen")
        A.label(f"L_{nm}_w{s}")
        A("s_add_u32 s70, s70, 2048")
        A("s_add_u32 s67, s67, 1")
        A(f"s_cmp_eq_u32 s67, {NS}")
        A(f"s_cselect_b32 s68, {wrap}, s69")
        A("s_cselect_b32 s67, 0, s67")
        A("s_waitcnt lgkmcnt(0)")
        A(f"v_add_u32 v{vw}, s68, v{vw}")
        A("s_barrier")
    A(f"v_add_u32 v{vt}, 512, v{vt}")
    A("s_add_u32 s65, s65, 1")
    A("s_cmp_lt_u32 s65, 9")
    A(f"s_cbranch_scc1 L_{nm}_lloop")
    A.label(f"L_{nm}_end")
    A("s_endpgm")
    g.vhi = max(g.vhi, va.hi)
    return g

def job_Bm(A, start, cnt=81):
    nm = "jB"
    A.label(f"L_{nm}")
    A(f"s_sub_u32 s{S_T}, s2, {start}")
    xcd_linear(A, S_T, S_T, cnt, start)
    sdivmod(A, 30, 31, S_T, 27)
    sdivmod(A, S_TN, S_TM, 31, 3)
    A("s_mul_i32 s30, s30, 3")
    A(f"s_add_u32 s{S_TM}, s{S_TM}, s30")
    A(f"s_add_u32 s30, s{S_TM}, s{S_TN}")
    A("s_lshl_b32 s30, s30, 1")
    mod18(A, S_ROT, 30)
    A("s_waitcnt lgkmcnt(0)")
    srd(A, SRD_M, P_WQKV, 1152 * 6912)
    srd(A, SRD_N, P_WO, 1152 * 2304)
    srd(A, SRD_O, P_WS, WS_USED)
    g = Gemm(nm, Op("rm", 128, SRD_M, S_TM, ld=6912, base=4608), Op("km", 128, SRD_N, S_TN, ld=2304), 2, 2, 18, 4, 4)
    g.emit_split(A)
    va = VAlloc(8); va.tmp = 4
    g.emit_consumer(A, va)
    A(f"s_lshl_b32 s30, s{S_TN}, 3"); A(f"s_lshl_b32 s31, s{S_TM}, 2")
    g.epi_fm(A, va, BMT, 36, 30, 31)
    A("s_endpgm")
    g.emit_loader(A)
    A.label(f"L_{nm}_end")
    A("s_endpgm")
    return g

def job_Wk(A, start):
    nm = "jW"
    A.label(f"L_{nm}")
    A(f"s_sub_u32 s{S_TM}, s2, {start}")
    A(f"s_mov_b32 s{S_TN}, 0")
    A(f"s_mov_b32 s{S_ROT}, 0")
    A("s_waitcnt lgkmcnt(0)")
    srd(A, SRD_M, P_WQC, 1152 * 2304)
    srd(A, SRD_O, P_WS, WS_USED)
    g = Gemm(nm, Op("rm", 96, SRD_M, S_TM, ld=2304, native=True), Op("fm", 160, SRD_O, S_TN, S=73728, base=KV), 2, 2, 18, 4, 4)
    g.emit_split(A)
    va = VAlloc(8); va.tmp = 4
    g.emit_consumer(A, va)
    A(f"s_mul_i32 s31, s{S_TM}, 6")
    g.epi_k16(A, va, WKT, 72, S_TN, 31)
    one = g.fb
    A(f"v_mov_b32 v{one}, 0x3f803f80"); A(f"v_mov_b32 v{one+1}, 0x3f803f80")
    A(f"v_bfe_u32 v5, v{V_R}, 2, 2")
    A("v_lshlrev_b32 v5, 9, v5")
    A(f"v_and_b32 v6, 3, v{V_R}")
    A("v_lshl_add_u32 v5, v6, 2, v5")
    A(f"s_lshl_b32 s28, s{S_TM}, 1")
    A(f"s_add_u32 s28, s28, s{g.s_wm}")
    A("s_lshl_b32 s28, s28, 4")
    A(f"s_mul_i32 s29, s{g.s_wn}, {5 * 2048}")
    A("s_add_u32 s28, s28, s29")
    A(f"s_add_u32 s28, s28, {CS}")
    for f in range(5):
        d = one + 4 + 4 * f
        for i in range(3):
            A(f"v_mfma_f32_16x16x16_bf16 {vr(d, 4)}, {vr(one, 2)}, {vr(g.acc(i, f), 2)}, {vr(d, 4) if i else 0}")
    A("s_nop 7")
    for f in range(5):
        A(f"buffer_store_dword v{one + 4 + 4 * f}, v5, s[{SRD_O}:{SRD_O+3}], s28 offen")
        if f < 4: A("s_add_u32 s28, s28, 2048")
    A("s_endpgm")
    g.emit_loader(A)
    A.label(f"L_{nm}_end")
    A("s_endpgm")
    return g

def job_Vo(A, start):
    nm = "jV"
    A.label(f"L_{nm}")
    A(f"s_sub_u32 s{S_TN}, s2, {start}")
    A(f"s_mov_b32 s{S_TM}, 0")
    A(f"s_mov_b32 s{S_ROT}, 0")
    A("s_waitcnt lgkmcnt(0)")
    srd(A, SRD_N, P_WOC, 1152 * 2304)
    srd(A, SRD_O, P_WS, WS_USED)
    g = Gemm(nm, Op("fm", 160, SRD_O, S_TM, S=73728, base=KV + 36864), Op("km", 64, SRD_N, S_TN, ld=2304, native=True), 2, 2, 18, 4, 4)
    g.emit_split(A)
    va = VAlloc(8); va.tmp = 4
    g.emit_consumer(A, va)
    A(f"s_lshl_b32 s30, s{S_TN}, 2")
    g.epi_k16(A, va, VOT, 10, 30, None)
    A("s_endpgm")
    g.emit_loader(A)
    A.label(f"L_{nm}_end")
    A("s_endpgm")
    return g

def kernel1(A):
    name = "k1_kernel"; nwg = 255
    kernel_prologue(A, name, nwg)
    A("s_cmp_lt_u32 s2, 144"); A("s_cbranch_scc1 L_jT")
    A("s_cmp_lt_u32 s2, 225"); A("s_cbranch_scc1 L_jB")
    A("s_cmp_lt_u32 s2, 237"); A("s_cbranch_scc1 L_jW")
    A("s_cmp_lt_u32 s2, 255"); A("s_cbranch_scc1 L_jV")
    A("s_endpgm")
    gs = [job_T(A, 0), job_Bm(A, 144), job_Wk(A, 225), job_Vo(A, 237)]
    v = max(g.vhi for g in gs); assert v <= 256
    return dict(name=name, grid=nwg, block=512, lds=max(g.lds for g in gs), vgpr=v)
```

```python
from core import *
from layout import *
import struct
def fbits(x): return struct.unpack("<I", struct.pack("<f", x))[0]

def xg_reduce(A, regs, tmps, op):
    for sw in ("v_permlane16_swap_b32", "v_permlane32_swap_b32"):
        for v, t in zip(regs, tmps): A(f"v_mov_b32 v{t}, v{v}")
        if len(regs) < 3: A("s_nop 1")
        for v, t in zip(regs, tmps): A(f"{sw} v{v}, v{t}")
        for v, t in zip(regs, tmps): A(f"{op} v{v}, v{v}, v{t}")

def job_S(A, start):
    nm = "jS"
    A.label(f"L_{nm}")
    A(f"s_sub_u32 s{S_T}, s2, {start}")
    xcd_linear(A, S_T, S_T, 128, start)
    A(f"s_lshr_b32 s{S_TN}, s{S_T}, 3")
    A(f"s_and_b32 s72, s{S_T}, 7")
    A(f"s_and_b32 s30, s{S_TN}, 8")
    A(f"s_add_u32 s{S_TM}, s72, s30")
    A(f"s_mov_b32 s{S_ROT}, 0")
    A("s_waitcnt lgkmcnt(0)")
    srd(A, SRD_O, P_WS, WS_USED)
    g = Gemm(nm, Op("fm", 128, SRD_O, S_TM, S=36864, base=H), Op("fm", 128, SRD_O, S_TN, S=36864, base=TT), 2, 2, 18, 4, 4)
    g.emit_split(A)
    va = VAlloc(8); va.tmp = 4
    g.emit_consumer(A, va)
    fb = g.fb
    MX = [fb + 2 * f for f in range(4)]
    TM_ = [fb + 8 + f for f in range(4)]
    ONE = fb + 12; PK = fb + 16; LS = fb + 48
    A(f"s_mov_b32 s74, {fbits(CLOG)}"); A(f"s_mov_b32 s75, {fbits(CLOG)}")
    A(f"s_lshl_b32 s28, s{S_TN}, 3")
    A(f"s_lshl_b32 s29, s{g.s_wn}, 2")
    A("s_add_u32 s28, s28, s29")
    A("s_lshl_b32 s30, s28, 11")
    A("s_lshl_b32 s28, s28, 5")
    A("s_lshl_b32 s29, s72, 2")
    A("s_add_u32 s28, s28, s29")
    A(f"s_lshl_b32 s29, s{g.s_wm}, 1")
    A("s_add_u32 s28, s28, s29")
    A("s_lshl_b32 s28, s28, 10")
    A(f"s_add_u32 s28, s28, {PP}")
    A("s_lshl_b32 s29, s72, 8")
    A("s_add_u32 s30, s30, s29")
    A(f"s_lshl_b32 s29, s{g.s_wm}, 3")
    A("s_add_u32 s30, s30, s29")
    A(f"s_add_u32 s30, s30, {ML}")
    A(f"v_lshlrev_b32 v4, 4, v{V_LANE}")
    for j in range(4): A(f"v_mov_b32 v{ONE + j}, 0x3f803f80")
    for f in range(4):
        vals = [g.acc(i, f) + e for i in range(4) for e in range(4)]
        A(f"v_max3_f32 v{MX[f]}, v{vals[0]}, v{vals[1]}, v{vals[2]}")
        for j in range(3, 15, 2):
            A(f"v_max3_f32 v{MX[f]}, v{MX[f]}, v{vals[j]}, v{vals[j+1]}")
        A(f"v_max_f32 v{MX[f]}, v{MX[f]}, v{vals[15]}")
    xg_reduce(A, MX, TM_, "v_max_f32")
    for f in range(4): A(f"v_mul_f32 v{MX[f]}, s74, v{MX[f]}")
    for f in range(4): A(f"v_ceil_f32 v{MX[f]}, v{MX[f]}")
    for f in range(4):
        for i in range(4):
            r = g.acc(i, f)
            for hh in range(2):
                A(f"v_pk_fma_f32 {vr(r + 2 * hh, 2)}, {vr(r + 2 * hh, 2)}, s[74:75], {vr(MX[f], 2)} op_sel_hi:[1,1,0] neg_lo:[0,0,1] neg_hi:[0,0,1]")
        for i in range(4):
            r = g.acc(i, f)
            for e in range(4): A(f"v_exp_f32 v{r + e}, v{r + e}")
        for i in range(4):
            r = g.acc(i, f); d = PK + 8 * f + 2 * i
            A(f"v_cvt_pk_bf16_f32 v{d}, v{r}, v{r+1}")
            A(f"v_cvt_pk_bf16_f32 v{d+1}, v{r+2}, v{r+3}")
        for q in range(2):
            A(f"buffer_store_dwordx4 {vr(PK + 8 * f + 4 * q, 4)}, v4, s[{SRD_O}:{SRD_O+3}], s28 offen offset:{q * 1024}")
        A(f"v_mfma_f32_16x16x32_bf16 {vr(LS + 4 * f, 4)}, {vr(ONE, 4)}, {vr(PK + 8 * f, 4)}, 0")
        A(f"v_mfma_f32_16x16x32_bf16 {vr(LS + 4 * f, 4)}, {vr(ONE, 4)}, {vr(PK + 8 * f + 4, 4)}, {vr(LS + 4 * f, 4)}")
        if f < 3: A(f"s_add_u32 s28, s28, {32 * 1024}")
    A("s_mov_b64 exec, 0xffff")
    A("s_nop 4")
    for f in range(4):
        A(f"v_mov_b32 v{MX[f] + 1}, v{LS + 4 * f}")
        A(f"buffer_store_dwordx2 {vr(MX[f], 2)}, v4, s[{SRD_O}:{SRD_O+3}], s30 offen")
        if f < 3: A("s_add_u32 s30, s30, 2048")
    A("s_endpgm")
    g.emit_loader(A)
    A.label(f"L_{nm}_end")
    A("s_endpgm")
    return g

def job_U(A, start):
    nm = "jU"
    A.label(f"L_{nm}")
    A(f"s_sub_u32 s{S_T}, s2, {start}")
    A(f"s_and_b32 s30, s{S_T}, 7")
    A(f"s_lshr_b32 s31, s{S_T}, 3")
    A("s_lshr_b32 s32, s30, 1")
    A("s_lshl_b32 s32, s32, 2")
    A("s_and_b32 s33, s31, 3")
    A(f"s_add_u32 s{S_TM}, s32, s33")
    A("s_and_b32 s32, s30, 1")
    A("s_lshl_b32 s32, s32, 2")
    A("s_lshr_b32 s33, s31, 2")
    A(f"s_add_u32 s{S_TN}, s32, s33")
    A(f"s_mov_b32 s{S_ROT}, 0")
    A("s_waitcnt lgkmcnt(0)")
    srd(A, SRD_O, P_WS, WS_USED)
    g = Gemm(nm, Op("fm", 128, SRD_O, S_TM, S=36864, base=H), Op("fm", 144, SRD_O, S_TN, S=36864, base=BMT), 4, 1, 18, 4, 2)
    g.emit_split(A)
    va = VAlloc(8); va.tmp = 4
    g.emit_consumer(A, va)
    A(f"s_lshr_b32 s30, s{S_TM}, 3")
    A("s_mul_i32 s30, s30, 72")
    A(f"s_mul_i32 s31, s{S_TN}, 9")
    A("s_add_u32 s30, s30, s31")
    A(f"s_and_b32 s31, s{S_TM}, 7")
    A("s_lshl_b32 s31, s31, 2")
    g.epi_fm(A, va, UT, 32, 30, 31)
    A("s_endpgm")
    g.emit_loader(A)
    A.label(f"L_{nm}_end")
    A("s_endpgm")
    return g

def kernel2(A):
    name = "k2_kernel"; nwg = 256
    kernel_prologue(A, name, nwg)
    A("s_cmp_lt_u32 s2, 128"); A("s_cbranch_scc1 L_jS")
    A("s_cmp_lt_u32 s2, 256"); A("s_cbranch_scc1 L_jU")
    A("s_endpgm")
    gs = [job_S(A, 0), job_U(A, 128)]
    v = max(g.vhi for g in gs); assert v <= 256
    return dict(name=name, grid=nwg, block=512, lds=max(g.lds for g in gs), vgpr=v)
```

```python
from core import *
from layout import *
from k2 import xg_reduce

def kernel3(A):
    name = "k3_kernel"; nwg = 256; nm = "jP"
    kernel_prologue(A, name, nwg)
    A(f"s_cmp_ge_u32 s2, {nwg}"); A(f"s_cbranch_scc1 L_{nm}_end")
    A("s_and_b32 s30, s2, 7")
    A("s_lshr_b32 s31, s2, 3")
    A("s_lshl_b32 s32, s30, 2")
    A("s_and_b32 s33, s31, 3")
    A(f"s_add_u32 s{S_TN}, s32, s33")
    A("s_lshr_b32 s72, s31, 2")
    A(f"s_lshr_b32 s73, s{S_TN}, 4")
    A("s_lshl_b32 s32, s73, 3")
    A(f"s_add_u32 s{S_TM}, s32, s72")
    A(f"s_mov_b32 s{S_ROT}, 0")
    A("s_waitcnt lgkmcnt(0)")
    srd(A, SRD_O, P_WS, WS_USED)
    g = Gemm(nm, Op("fm", 144, SRD_O, S_TM, S=32768, base=UT), Op("fm", 64, SRD_O, S_TN, S=32768, base=PP), 1, 4, 16, 4, 2)
    XB = g.lds; GB = XB + 18432; WB = GB + 2048; DB = WB + 24576
    g.lds = DB + 4096
    g.emit_split(A)
    va = VAlloc(8); va.tmp = 4
    vRL = va(2, 2); vD = va(); vDA = va()
    def pre(A):
        t = g.fb
        A(f"s_lshl_b32 s74, s{S_TN}, 2")
        A(f"s_add_u32 s74, s74, s{S_W}")
        A("s_lshl_b32 s28, s74, 11")
        A(f"s_add_u32 s28, s28, {ML}")
        A(f"v_lshlrev_b32 v4, 4, v{V_LANE}")
        A(f"buffer_load_dwordx4 {vr(t, 4)}, v4, s[{SRD_O}:{SRD_O+3}], s28 offen")
        A(f"buffer_load_dwordx4 {vr(t + 4, 4)}, v4, s[{SRD_O}:{SRD_O+3}], s28 offen offset:1024")
        A(f"s_lshl_b32 s29, s{S_W}, 10")
        A(f"s_add_u32 s29, s29, {DB}")
        A(f"v_lshl_add_u32 v{vDA}, v{V_R}, 2, s29")
        A(f"v_lshl_add_u32 v5, v{V_G}, 7, v{vDA}")
        A("s_waitcnt vmcnt(0)")
        A(f"v_max3_f32 v6, v{t}, v{t+2}, v{t+4}")
        A(f"v_max_f32 v6, v6, v{t+6}")
        xg_reduce(A, [6], [7], "v_max_f32")
        for j in range(4): A(f"v_sub_f32 v{t + 2 * j}, v6, v{t + 2 * j}")
        for j in range(4): A(f"v_exp_f32 v{t + 8 + j}, -v{t + 2 * j}")
        for j in range(4): A(f"v_cvt_u32_f32 v{t + 2 * j}, v{t + 2 * j}")
        A(f"v_mul_f32 v6, v{t + 8}, v{t + 1}")
        for j in range(1, 4): A(f"v_fmac_f32 v6, v{t + 8 + j}, v{t + 2 * j + 1}")
        for j in range(4): A(f"v_min_u32 v{t + 2 * j}, 0xff, v{t + 2 * j}")
        for j in range(4): A(f"v_mul_u32_u24 v{t + 2 * j}, 0x800080, v{t + 2 * j}")
        for j, off in enumerate((0, 64, 512, 576)):
            A(f"ds_write_b32 v5, v{t + 2 * j} offset:{off}")
        xg_reduce(A, [6], [7], "v_add_f32")
        A(f"v_rcp_f32 v{vRL}, v6")
        A("s_waitcnt lgkmcnt(0)")
    g.step_reads = lambda: [("d", f"ds_read_b32 v{vD}, v{vDA}")]
    g.step_adv = lambda A: A(f"v_add_u32 v{vDA}, 64, v{vDA}")
    def nhook(A, T, reg, f, kk):
        T.need("d")
        for j in range(4): A(f"v_pk_sub_u16 v{reg + j}, v{reg + j}, v{vD} clamp")
        A("s_nop 1")
    g.emit_consumer(A, va, pre=pre, nhook=nhook)
    fb = g.fb
    XR = fb; GR = fb + 20; PK = va(20, 4); U = va(4, 2)
    WF = fb
    SC = va(28, 4); ONE = va(4, 4)
    g.vhi = max(g.vhi, va.hi)
    A("s_barrier")
    A(f"s_mul_i32 s28, s{S_W}, {16 * 288}")
    A(f"s_add_u32 s28, s28, {XB}")
    A(f"v_mul_u32_u24 v4, 288, v{V_R}")
    A(f"v_lshl_add_u32 v4, v{V_G}, 3, v4")
    A("v_add_u32 v4, s28, v4")
    A(f"v_lshlrev_b32 v5, 4, v{V_G}")
    A(f"v_add_u32 v5, {GB}, v5")
    T = Lgkm(A)
    for i in range(9):
        A(f"ds_read_b64 {vr(XR + 2 * i, 2)}, v4 offset:{i * 32}"); T.issue(("x", i))
        A(f"ds_read_b128 {vr(GR + 4 * i, 4)}, v5 offset:{i * 64}"); T.issue(("g", i))
    A("s_mov_b32 s71, 0xffff0000")
    A("s_mul_i32 s28, s74, 72")
    A("s_mul_i32 s29, s72, 9")
    A("s_add_u32 s28, s28, s29")
    A("s_lshl_b32 s28, s28, 9")
    A(f"s_add_u32 s28, s28, {X1F}")
    A("s_add_u32 s29, s28, 4096")
    A(f"v_lshlrev_b32 v6, 3, v{V_LANE}")
    for j in range(4): A(f"v_mov_b32 v{ONE + j}, 0x3f803f80")
    for i in range(9):
        r = g.acc(i, 0)
        for hh in range(2):
            A(f"v_pk_mul_f32 {vr(r + 2 * hh, 2)}, {vr(r + 2 * hh, 2)}, {vr(vRL, 2)} op_sel_hi:[1,0]")
        T.need(("g", i))
        for hh in range(2):
            A(f"v_lshlrev_b32 v{U + 2 * hh}, 16, v{XR + 2 * i + hh}")
            A(f"v_and_b32 v{U + 2 * hh + 1}, s71, v{XR + 2 * i + hh}")
        for hh in range(2):
            A(f"v_pk_fma_f32 {vr(r + 2 * hh, 2)}, {vr(r + 2 * hh, 2)}, {vr(GR + 4 * i + 2 * hh, 2)}, {vr(U + 2 * hh, 2)}")
        for hh in range(2):
            A(f"v_cvt_pk_bf16_f32 v{PK + 2 * i + hh}, v{r + 2 * hh}, v{r + 2 * hh + 1}")
        A(f"buffer_store_dwordx2 {vr(PK + 2 * i, 2)}, v6, s[{SRD_O}:{SRD_O+3}], s{28 if i < 8 else 29} offen offset:{(i % 8) * 512}")
    A(f"v_mov_b32 v{PK + 18}, 0"); A(f"v_mov_b32 v{PK + 19}, 0")
    for k in range(4):
        A(f"v_mov_b32 v{WF + 20 * k + 18}, 0"); A(f"v_mov_b32 v{WF + 20 * k + 19}, 0")
    A("s_barrier")
    A(f"v_add_u32 v7, {WB}, v6")
    SS = SC + 20; SQ = SC + 24
    def wread(pt):
        base = WF + 20 * (pt % 4)
        for i in range(9):
            A(f"ds_read_b64 {vr(base + 2 * i, 2)}, v7 offset:{(pt * 9 + i) * 512}"); T.issue(("w", pt, i))
    wread(0)
    for q in range(5):
        A(f"v_mfma_f32_16x16x32_bf16 {vr(SS, 4)}, {vr(ONE, 4)}, {vr(PK + 4 * q, 4)}, {vr(SS, 4) if q else 0}")
        A(f"v_mfma_f32_16x16x32_bf16 {vr(SQ, 4)}, {vr(PK + 4 * q, 4)}, {vr(PK + 4 * q, 4)}, {vr(SQ, 4) if q else 0}")
    A("s_lshl_b32 s28, s74, 3")
    A("s_add_u32 s28, s28, s72")
    A("s_mul_i32 s28, s28, 5120")
    A(f"s_add_u32 s28, s28, {SCP}")
    A("s_add_u32 s29, s28, 4096")
    A(f"v_lshlrev_b32 v4, 4, v{V_LANE}")
    for pt in range(5):
        if pt < 4: wread(pt + 1)
        base = WF + 20 * (pt % 4); d = SC + 4 * pt
        for q in range(5):
            T.need(("w", pt, min(8, 2 * q + 1)))
            A(f"v_mfma_f32_16x16x32_bf16 {vr(d, 4)}, {vr(base + 4 * q, 4)}, {vr(PK + 4 * q, 4)}, {vr(d, 4) if q else 0}")
        if pt >= 2:
            A(f"buffer_store_dwordx4 {vr(SC + 4 * (pt - 2), 4)}, v4, s[{SRD_O}:{SRD_O+3}], s28 offen offset:{(pt - 2) * 1024}")
    A(f"v_and_b32 v5, 3, v{V_R}")
    A("v_cmp_eq_u32 vcc, 1, v5")
    A("v_cmp_eq_u32 s[30:31], 2, v5")
    A("v_cmp_eq_u32 s[32:33], 3, v5")
    A(f"v_cndmask_b32 v{SS + 1}, v{SQ}, v{SQ + 1}, vcc")
    A(f"v_cndmask_b32 v{SS + 1}, v{SS + 1}, v{SQ + 2}, s[30:31]")
    A(f"v_cndmask_b32 v{SS + 1}, v{SS + 1}, v{SQ + 3}, s[32:33]")
    A(f"buffer_store_dwordx4 {vr(SC + 12, 4)}, v4, s[{SRD_O}:{SRD_O+3}], s28 offen offset:3072")
    A(f"buffer_store_dwordx4 {vr(SC + 16, 4)}, v4, s[{SRD_O}:{SRD_O+3}], s29 offen")
    A("s_lshl_b32 s28, s74, 10")
    A("s_lshr_b32 s29, s72, 1")
    A("s_lshl_b32 s29, s29, 8")
    A("s_add_u32 s28, s28, s29")
    A("s_and_b32 s29, s72, 1")
    A("s_lshl_b32 s29, s29, 3")
    A("s_add_u32 s28, s28, s29")
    A(f"s_add_u32 s28, s28, {ST}")
    A(f"v_lshlrev_b32 v5, 4, v{V_R}")
    A("s_mov_b32 exec_lo, 0x00f0000f")
    A("s_mov_b32 exec_hi, 0xf0000f00")
    A(f"buffer_store_dwordx2 {vr(SS, 2)}, v5, s[{SRD_O}:{SRD_O+3}], s28 offen")
    A("s_endpgm")
    def after(A):
        lva = g.lva
        srd(A, SRD_E, P_X, 2048 * 2304)
        A("s_mul_i32 s28, s60, 576")
        A(f"v_add_u32 v4, s28, v{V_LANE}")
        A(f"s_mul_i32 s29, s{S_TN}, {64 * 2304}")
        A("s_mul_i32 s30, s72, 288")
        A("s_add_u32 s29, s29, s30")
        A("s_mul_i32 s30, s60, 9216")
        A(f"s_add_u32 s30, s30, {XB}")
        for i in range(9):
            A(f"v_add_u32 v5, {64 * i}, v4")
            A("v_mul_u32_u24 v6, 3641, v5")
            A("v_lshrrev_b32 v6, 16, v6")
            A(f"v_mul_u32_u24 v6, {2304 - 288}, v6")
            A("v_lshl_add_u32 v6, v5, 4, v6")
            A(f"s_add_u32 m0, s30, {i * 1024}")
            A("s_nop 0")
            A(f"buffer_load_dwordx4 v6, s[{SRD_E}:{SRD_E+3}], s29 offen lds")
        A(f"v_lshlrev_b32 v4, 4, v{V_LANE}")
        A(f"s_mul_i32 s28, s73, {3456 * 4}")
        A("s_mul_i32 s29, s72, 576")
        A("s_add_u32 s28, s28, s29")
        A(f"s_add_u32 s28, s28, {MOD + 2304 * 4}")
        A("s_lshl_b32 s29, s60, 10")
        A(f"s_add_u32 m0, s29, {GB}")
        A("s_nop 0")
        A(f"buffer_load_dwordx4 v4, s[{SRD_O}:{SRD_O+3}], s28 offen lds")
        A(f"v_lshrrev_b32 v5, 5, v{V_LANE}")
        A("s_mul_i32 s28, s60, 24")
        A("v_add_u32 v5, s28, v5")
        A(f"v_and_b32 v7, 31, v{V_LANE}")
        A("v_lshlrev_b32 v7, 4, v7")
        A(f"s_mul_i32 s28, s73, {5 * 72 * 512}")
        A(f"s_mul_i32 s29, s72, {9 * 512}")
        A("s_add_u32 s28, s28, s29")
        A(f"s_add_u32 s28, s28, {WKT}")
        A("s_mul_i32 s30, s60, 12288")
        A(f"s_add_u32 s30, s30, {WB}")
        for i in range(12):
            A(f"v_add_u32 v4, {2 * i}, v5")
            A("v_min_u32 v4, 44, v4")
            A("v_mul_u32_u24 v6, 57, v4")
            A("v_lshrrev_b32 v6, 9, v6")
            A("v_mul_u32_u24 v6, 63, v6")
            A("v_add_u32 v6, v6, v4")
            A("v_lshl_add_u32 v6, v6, 9, v7")
            A(f"s_add_u32 m0, s30, {i * 1024}")
            A("s_nop 0")
            A(f"buffer_load_dwordx4 v6, s[{SRD_O}:{SRD_O+3}], s28 offen lds")
        return 22
    g.emit_loader(A, after=after)
    A("s_waitcnt vmcnt(12)")
    A("s_barrier")
    A("s_waitcnt vmcnt(0)")
    A("s_barrier")
    A.label(f"L_{nm}_end")
    A("s_endpgm")
    assert g.vhi <= 256
    return dict(name=name, grid=nwg, block=512, lds=g.lds, vgpr=g.vhi)
```

```python
from core import *
from layout import *
from k2 import xg_reduce, fbits

def kernel4(A):
    name = "k4_kernel"; nwg = 256
    kernel_prologue(A, name, nwg)
    A(f"s_cmp_ge_u32 s2, {nwg}"); A("s_cbranch_scc1 L_k4_end")
    A("s_and_b32 s30, s2, 7")
    A("s_lshr_b32 s31, s2, 3")
    A("s_lshl_b32 s30, s30, 4")
    A("s_lshr_b32 s32, s31, 1")
    A("s_add_u32 s60, s30, s32")
    A("s_and_b32 s61, s31, 1")
    A("s_lshr_b32 s62, s60, 6")
    A(f"s_min_u32 s63, s{S_W}, 4")
    A(f"v_lshlrev_b32 v4, 4, v{V_LANE}")
    A(f"v_lshlrev_b32 v5, 3, v{V_LANE}")
    A(f"v_lshlrev_b32 v6, 9, v{V_G}")
    A(f"v_lshl_add_u32 v6, v{V_R}, 4, v6")
    A("s_waitcnt lgkmcnt(0)")
    srd(A, SRD_O, P_WS, WS_USED)
    srd(A, SRD_E, P_OUT, 2048 * 2304)
    SCR = 8; STR = 40; CSR = 44; VO = 52; XR = VO + 72; ACC = XR + 12; Z = ACC + 24; PK = Z + 20
    hi = PK + 12
    O = f"s[{SRD_O}:{SRD_O+3}]"
    A("s_lshl_b32 s28, s60, 10")
    A(f"s_add_u32 s28, s28, {ST}")
    A(f"buffer_load_dwordx4 {vr(STR, 4)}, v4, {O}, s28 offen")
    A("s_mul_i32 s28, s62, 5")
    A("s_add_u32 s28, s28, s63")
    A("s_lshl_b32 s28, s28, 11")
    A(f"s_add_u32 s28, s28, {CS}")
    A(f"buffer_load_dwordx4 {vr(CSR, 4)}, v6, {O}, s28 offen")
    A(f"buffer_load_dwordx4 {vr(CSR + 4, 4)}, v6, {O}, s28 offen offset:256")
    A("s_mul_i32 s28, s60, 40960")
    A("s_lshl_b32 s29, s63, 10")
    A("s_add_u32 s28, s28, s29")
    A(f"s_add_u32 s28, s28, {SCP}")
    for ct in range(8):
        A(f"buffer_load_dwordx4 {vr(SCR + 4 * ct, 4)}, v4, {O}, s28 offen")
        if ct < 7: A("s_add_u32 s28, s28, 5120")
    A("s_mul_i32 s64, s61, 36")
    A(f"s_mul_i32 s29, s{S_W}, 6")
    A("s_add_u32 s64, s64, s29")
    A("s_mul_i32 s28, s64, 5120")
    A("s_mul_i32 s29, s62, 2560")
    A("s_add_u32 s28, s28, s29")
    A(f"s_add_u32 s28, s28, {VOT}")
    for i in range(6):
        for pt in range(5):
            A(f"buffer_load_dwordx2 {vr(VO + 12 * i + 2 * pt, 2)}, v5, {O}, s28 offen offset:{pt * 512}")
        if i < 5: A("s_add_u32 s28, s28, 5120")
    A("s_mul_i32 s28, s60, 72")
    A("s_add_u32 s28, s28, s64")
    A("s_lshl_b32 s28, s28, 9")
    A(f"s_add_u32 s28, s28, {X1F}")
    for i in range(6):
        A(f"buffer_load_dwordx2 {vr(XR + 2 * i, 2)}, v5, {O}, s28 offen offset:{i * 512}")
    for i in range(6):
        A(f"v_mov_b32 v{VO + 12 * i + 10}, 0"); A(f"v_mov_b32 v{VO + 12 * i + 11}, 0")
    A(f"v_mov_b32 v{PK + 10}, 0"); A(f"v_mov_b32 v{PK + 11}, 0")
    A(f"v_cmp_gt_u32 vcc, 8, v{V_R}")
    A("s_waitcnt vmcnt(46)")
    A(f"v_pk_add_f32 {vr(STR, 2)}, {vr(STR, 2)}, {vr(STR + 2, 2)}")
    xg_reduce(A, [STR, STR + 1], [STR + 2, STR + 3], "v_add_f32")
    A(f"v_mul_f32 v{STR}, {1.0 / D!r}, v{STR}")
    A(f"v_mov_b32 v{STR + 2}, 0x3727c5ac")
    A(f"v_fmac_f32 v{STR + 2}, {1.0 / D!r}, v{STR + 1}")
    A(f"v_fma_f32 v{STR + 2}, -v{STR}, v{STR}, v{STR + 2}")
    A(f"v_max_f32 v{STR + 2}, 0x3727c5ac, v{STR + 2}")
    A(f"v_rsq_f32 v{STR + 2}, v{STR + 2}")
    A("s_waitcnt vmcnt(44)")
    for e in range(4): A(f"v_cndmask_b32 v{CSR + 4 + e}, 0, v{CSR + 4 + e}, vcc")
    A(f"v_mul_f32 v{STR + 2}, {CLOG!r}, v{STR + 2}")
    for e in range(4): A(f"v_add_f32 v{CSR + e}, v{CSR + e}, v{CSR + 4 + e}")
    for rot in (1, 2, 4, 8):
        for e in range(4):
            A(f"v_add_f32_dpp v{CSR + e}, v{CSR + e}, v{CSR + e} row_ror:{rot} row_mask:0xf bank_mask:0xf")
    for ct in range(1, 8):
        A(f"s_waitcnt vmcnt({36 + 7 - ct})")
        for hh in range(2):
            A(f"v_pk_add_f32 {vr(SCR + 2 * hh, 2)}, {vr(SCR + 2 * hh, 2)}, {vr(SCR + 4 * ct + 2 * hh, 2)}")
    for e in range(4): A(f"v_fma_f32 v{SCR + e}, -v{STR}, v{CSR + e}, v{SCR + e}")
    for e in range(4): A(f"v_mul_f32 v{SCR + e}, v{SCR + e}, v{STR + 2}")
    A("s_cmp_eq_u32 s63, 4")
    A("s_cselect_b32 s31, 0xffff0000, 0")
    A("s_mov_b32 s30, 0")
    A("v_mov_b32 v7, 0xff800000")
    for e in range(1, 4): A(f"v_cndmask_b32 v{SCR + e}, v{SCR + e}, v7, s[30:31]")
    A("s_lshl_b32 s28, s63, 10")
    A("v_add_u32 v7, s28, v4")
    A(f"ds_write_b128 v7, {vr(SCR, 4)}")
    A("s_waitcnt lgkmcnt(0)")
    A("s_barrier")
    for pt in range(5): A(f"ds_read_b128 {vr(Z + 4 * pt, 4)}, v4 offset:{pt * 1024}")
    A(f"s_mul_i32 s28, s{S_W}, {16 * 208}")
    A("s_add_u32 s28, s28, 5120")
    A(f"v_mul_u32_u24 v6, 208, v{V_R}")
    A(f"v_lshl_add_u32 v6, v{V_G}, 3, v6")
    A("v_add_u32 v6, s28, v6")
    for it in range(3):
        A(f"v_add_u32 v{SCR + 8}, {64 * it}, v{V_LANE}")
        A(f"v_mul_u32_u24 v{SCR + 9}, 171, v{SCR + 8}")
        A(f"v_lshrrev_b32 v{SCR + 9}, 11, v{SCR + 9}")
        A(f"v_lshlrev_b32 v{SCR + 8}, 4, v{SCR + 8}")
        A(f"v_lshl_add_u32 v{SCR + it}, v{SCR + 9}, 4, v{SCR + 8}")
        A(f"v_add_u32 v{SCR + it}, s28, v{SCR + it}")
        A(f"v_mul_u32_u24 v{SCR + 9}, {2304 - 192}, v{SCR + 9}")
        A(f"v_add_u32 v{SCR + 4 + it}, v{SCR + 9}, v{SCR + 8}")
    A("s_waitcnt lgkmcnt(0)")
    M = STR
    A(f"v_max3_f32 v{M}, v{Z}, v{Z+1}, v{Z+2}")
    for j in range(3, 19, 2): A(f"v_max3_f32 v{M}, v{M}, v{Z+j}, v{Z+j+1}")
    A(f"v_max_f32 v{M}, v{M}, v{Z+19}")
    xg_reduce(A, [M], [M + 1], "v_max_f32")
    for j in range(10):
        A(f"v_pk_add_f32 {vr(Z + 2 * j, 2)}, {vr(Z + 2 * j, 2)}, {vr(M, 2)} op_sel_hi:[1,0] neg_lo:[0,1] neg_hi:[0,1]")
    for j in range(20): A(f"v_exp_f32 v{Z + j}, v{Z + j}")
    for j in range(4): A(f"v_mov_b32 v{CSR + j}, 0x3f803f80")
    for j in range(10): A(f"v_cvt_pk_bf16_f32 v{PK + j}, v{Z + 2 * j}, v{Z + 2 * j + 1}")
    A("s_nop 1")
    for q in range(3):
        A(f"v_mfma_f32_16x16x32_bf16 {vr(CSR + 4, 4)}, {vr(CSR, 4)}, {vr(PK + 4 * q, 4)}, {vr(CSR + 4, 4) if q else 0}")
    for i in range(6):
        A(f"s_waitcnt vmcnt({6 + 5 * (5 - i)})")
        for q in range(3):
            A(f"v_mfma_f32_16x16x32_bf16 {vr(ACC + 4 * i, 4)}, {vr(VO + 12 * i + 4 * q, 4)}, {vr(PK + 4 * q, 4)}, {vr(ACC + 4 * i, 4) if q else 0}")
    A(f"v_rcp_f32 v{M}, v{CSR + 4}")
    A("s_mov_b32 s71, 0xffff0000")
    A("s_waitcnt vmcnt(0)")
    for i in range(6):
        for hh in range(2):
            A(f"v_lshlrev_b32 v{Z + 2 * hh}, 16, v{XR + 2 * i + hh}")
            A(f"v_and_b32 v{Z + 2 * hh + 1}, s71, v{XR + 2 * i + hh}")
        for hh in range(2):
            A(f"v_pk_fma_f32 {vr(Z + 2 * hh, 2)}, {vr(ACC + 4 * i + 2 * hh, 2)}, {vr(M, 2)}, {vr(Z + 2 * hh, 2)} op_sel_hi:[1,0,1]")
        for hh in range(2):
            A(f"v_cvt_pk_bf16_f32 v{XR + 2 * i + hh}, v{Z + 2 * hh}, v{Z + 2 * hh + 1}")
        A(f"ds_write_b64 v6, {vr(XR + 2 * i, 2)} offset:{i * 32}")
    A(f"s_mul_i32 s28, s60, {16 * 2304}")
    A("s_lshl_b32 s29, s64, 5")
    A("s_add_u32 s28, s28, s29")
    A("s_waitcnt lgkmcnt(0)")
    for it in range(3): A(f"ds_read_b128 {vr(VO + 4 * it, 4)}, v{SCR + it}")
    for it in range(3):
        A(f"s_waitcnt lgkmcnt({2 - it})")
        A(f"buffer_store_dwordx4 {vr(VO + 4 * it, 4)}, v{SCR + 4 + it}, s[{SRD_E}:{SRD_E+3}], s28 offen")
    A.label("L_k4_end")
    A("s_endpgm")
    return dict(name=name, grid=nwg, block=384, lds=5120 + 6 * 16 * 208, vgpr=hi)
```

```python
from core import *
import build as B, k0, k1, k2, k3, k4
def kempty(A):
    A.raw(".globl ke_kernel\n.p2align 8\n.type ke_kernel,@function\nke_kernel:")
    A("s_endpgm")
    return dict(name="ke_kernel", grid=256, block=256, lds=0, vgpr=8)
def kpf(A):
    name = "kpf_kernel"
    kernel_prologue(A, name, 256)
    A("s_cmp_ge_u32 s2, 256"); A("s_cbranch_scc1 L_pf_end")
    A("s_lshl_b32 s4, s2, 2"); A(f"s_add_u32 s4, s4, s{S_W}")
    A("s_lshl_b32 s4, s4, 10")
    A(f"v_lshl_add_u32 v4, v{V_LANE}, 4, s4")
    A("s_waitcnt lgkmcnt(0)")
    r = 8
    for ptr, size in ((P_X, 4718592), (P_WQKV, 7962624), (P_WO, 2654208), (P_WQC, 2654208), (P_WKVC, 5308416), (P_WOC, 2654208), (P_WMOD, 7962624)):
        srd(A, SRD_M, ptr, size)
        for j in range(-(-size // (1 << 20))):
            A(f"s_mov_b32 s28, {j << 20}")
            A(f"buffer_load_dwordx4 {vr(r, 4)}, v4, s[{SRD_M}:{SRD_M+3}], s28 offen"); r += 4
    A("s_waitcnt vmcnt(0)")
    A.label("L_pf_end"); A("s_endpgm")
    return dict(name=name, grid=256, block=256, lds=0, vgpr=r)
base = [k0.kernel0, k1.kernel1, k2.kernel2, k3.kernel3, k4.kernel4]
def variant(out, order):
    B.build(base + [kempty, kpf], out)
    t = open(out).read().split("\n")
    ll = {l.split("kernel=")[1].split()[0]: l for l in t if l.startswith("; @launch")}
    first = min(i for i, l in enumerate(t) if l.startswith("; @launch"))
    t = [l for l in t if not l.startswith("; @launch")]
    t[first:first] = [ll[k + "_kernel"] for k in order]
    open(out, "w").write("\n".join(t))
b = ["k0", "k1", "k2", "k3", "k4"]
variant("e_base.s", b)
variant("e_empty5.s", b + ["ke"] * 5)
variant("e_k0dup.s", ["k0"] + b)
variant("e_pf.s", ["kpf"] + b)
variant("e_pf2.s", ["kpf", "kpf"] + b)
variant("e_twice.s", b + b)
```

```python
D = 1152
import os
STAMP = int(os.environ.get("STAMP", "0"))
STAMP_OFF = 56 << 20
NOLOAD = int(os.environ.get("NOLOAD", "0")); NOMFMA = int(os.environ.get("NOMFMA", "0")); NOREAD = int(os.environ.get("NOREAD", "0"))
SC1 = int(os.environ.get("SC1", "0"))
KSEL = int(os.environ.get("KSEL", "0"))
CYC = int(os.environ.get("CYC", "0"))
class Asm:
    def __init__(self):
        self.L = []; self.kid = -1; self.inloop = False
    def __call__(self, s):
        if STAMP and s == "s_endpgm":
            self.dump_stamps()
        if SC1 and s.startswith("buffer_store") and " sc1" not in s:
            if "; small" not in s or SC1 == 1: s = s.replace(" ; small", "") + " sc1"
        if self.kid == KSEL:
            if NOLOAD and s.endswith(" lds"): return
            if NOMFMA and s.startswith("v_mfma"): return
            if NOREAD and s.startswith("ds_read") and self.inloop: return
        self.L.append("    " + s)
    def stamp(self, i):
        if STAMP:
            self.L.append(f"    {'s_memtime' if CYC else 's_memrealtime'} s[{80 + 2 * i}:{81 + 2 * i}]")
    def dump_stamps(self):
        A = lambda s: self.L.append("    " + s)
        A("s_mov_b64 exec, -1")
        self.stamp(4)
        A("s_waitcnt vmcnt(0) lgkmcnt(0)")
        self.stamp(5)
        A(f"s_add_u32 s92, s58, {STAMP_OFF + self.kid * 131072}")
        A("s_addc_u32 s93, s59, 0")
        A("s_mov_b32 s94, 131072")
        A("s_mov_b32 s95, 0x20000")
        A("s_lshl_b32 s79, s78, 3")
        A("s_add_u32 s79, s79, s3")
        A("s_lshl_b32 s79, s79, 5")
        A("v_mov_b32 v1, s79")
        A("s_waitcnt lgkmcnt(0)")
        for j in range(6):
            A(f"v_mov_b32 v2, s{80 + 2 * j}")
            A(f"buffer_store_dword v2, v1, s[92:95], 0 offen offset:{4 * j}")
    def label(self, l):
        self.L.append(l + ":")
    def raw(self, s):
        self.L.append(s)
    def text(self):
        return "\n".join(self.L) + "\n"

def vr(base, n=1):
    return f"v{base}" if n == 1 else f"v[{base}:{base+n-1}]"
def sr(base, n=1):
    return f"s{base}" if n == 1 else f"s[{base}:{base+n-1}]"

class VAlloc:
    def __init__(self, start):
        self.n = start; self.hi = start
    def __call__(self, k=1, align=1):
        self.n = (self.n + align - 1) // align * align
        r = self.n; self.n += k; self.hi = max(self.hi, self.n)
        return r

class Lgkm:
    def __init__(self, A):
        self.A = A; self.q = []
    def issue(self, tag):
        self.q.append(tag)
    def need(self, tag):
        if tag in self.q:
            i = len(self.q) - 1 - self.q[::-1].index(tag)
            n = min(len(self.q) - 1 - i, 15)
            self.A(f"s_waitcnt lgkmcnt({n})")
            self.q = self.q[len(self.q) - n:] if n else []
    def clear(self):
        self.q = []

P_X, P_C, P_Y, P_WQKV, P_WO, P_WQC, P_WKVC, P_WOC, P_WMOD, P_OUT, P_DBG, P_WS = 36, 38, 40, 42, 44, 46, 48, 50, 52, 54, 56, 58
S_W = 3
S_T = 4
S_TM, S_TN = 5, 6
S_ROT = 7
SRD_M, SRD_N, SRD_O, SRD_E, SRD_F = 8, 12, 16, 20, 24
V_LANE, V_R, V_G = 0, 1, 2
WS_BYTES = 64 << 20

def srd(A, d, ptr, size, off=0):
    if off:
        A(f"s_add_u32 s{d}, s{ptr}, {off}")
        A(f"s_addc_u32 s{d+1}, s{ptr+1}, 0")
    else:
        A(f"s_mov_b32 s{d}, s{ptr}")
        A(f"s_mov_b32 s{d+1}, s{ptr+1}")
    A(f"s_mov_b32 s{d+2}, {size}")
    A(f"s_mov_b32 s{d+3}, 0x20000")

def sdiv(A, q, x, c, tmp=None):
    if c & (c - 1) == 0:
        A(f"s_lshr_b32 s{q}, s{x}, {c.bit_length() - 1}")
    else:
        A(f"s_mul_hi_u32 s{q}, s{x}, {-(-(1 << 32) // c)}")
def sdivmod(A, q, r, x, c):
    if c & (c - 1) == 0:
        A(f"s_lshr_b32 s{q}, s{x}, {c.bit_length() - 1}")
        A(f"s_and_b32 s{r}, s{x}, {c - 1}")
    else:
        A(f"s_mul_hi_u32 s{q}, s{x}, {-(-(1 << 32) // c)}")
        A(f"s_mul_i32 s35, s{q}, {c}")
        A(f"s_sub_u32 s{r}, s{x}, s35")

def xcd_linear(A, dst, t, cnt, start):
    q, rem = divmod(cnt, 8)
    A(f"s_and_b32 s33, s{t}, 7")
    A(f"s_lshr_b32 s34, s{t}, 3")
    A(f"s_mul_i32 s32, s33, {q}")
    if rem:
        A(f"s_min_u32 s33, s33, {rem}")
        A("s_add_u32 s32, s32, s33")
    A(f"s_add_u32 s{dst}, s32, s34")

class Op:
    def __init__(self, kind, R, srd, tile_sgpr, *, S=None, ld=None, base=0, native=False, extra_sgpr=None):
        self.kind = kind; self.R = R; self.srd = srd; self.tile = tile_sgpr
        self.S = S
        self.ld = ld
        self.base = base
        self.native = native
        self.extra = extra_sgpr
        self.bytes = R * 128
        self.pieces = R // 8
        self.kstep = {"fm": 2048 * (S or 0), "rm": 128, "km": 64 * (ld or 0)}[kind]

    def loader_setup(self, A, va, NL, s_lw, s_m0, ldsoff):
        self.NL = NL; self.ldsoff = ldsoff; self.s_m0 = s_m0
        cnt = self.pieces // NL; assert cnt * NL == self.pieces
        self.cnt = cnt
        self.voff = [va() for _ in range(cnt if self.kind != "fm" else 1)]
        v0 = self.voff[0]; t = va.tmp
        if self.kind == "fm":
            self.voff = [v0] + [va() for _ in range((cnt - 1) // 4)]
            A(f"s_mul_i32 s28, s{self.tile}, {self.bytes}")
            A(f"s_mul_i32 s29, s{s_lw}, {cnt * 1024}")
            A("s_add_u32 s28, s28, s29")
            if self.base: A(f"s_add_u32 s28, s28, {self.base}")
            if self.extra is not None: A(f"s_add_u32 s28, s28, s{self.extra}")
            A(f"v_lshl_add_u32 v{v0}, v{V_LANE}, 4, s28")
            if ldsoff: A(f"s_add_u32 s{s_m0}, s29, {ldsoff}")
            else: A(f"s_mov_b32 s{s_m0}, s29")
            for j in range(1, len(self.voff)):
                A(f"v_add_u32 v{self.voff[j]}, {j * 4096}, v{v0}")
            self.imm = [(i % 4) * 1024 for i in range(cnt)]
            self.m0add = [(i // 4) * 4096 for i in range(cnt)]
            self.voff = [self.voff[i // 4] for i in range(cnt)]
            return
        else:
            if self.kind == "rm":
                rpp, lpr = 8, 8
            else:
                lpr = self.R // 8; rpp = 64 // lpr
            sh = lpr.bit_length() - 1
            A(f"v_lshrrev_b32 v{t}, {sh}, v{V_LANE}")
            A(f"v_and_b32 v{t+1}, {lpr - 1}, v{V_LANE}")
            if self.kind == "rm":
                A(f"s_and_b32 s29, s{s_lw}, 1")
                A("s_lshl_b32 s29, s29, 2")
                A(f"v_add_u32 v{t+2}, s29, v{V_G}")
            elif self.R == 128 and NL == 2:
                assert not self.native
                A(f"v_lshlrev_b32 v{t+2}, 1, v{V_G}")
            elif self.R == 128:
                assert NL == 4
                if self.native: A(f"s_and_b32 s29, s{s_lw}, 1")
                else: A(f"s_bfe_u32 s29, s{s_lw}, 0x10001")
                A("s_lshl_b32 s29, s29, 3")
                A(f"v_lshl_add_u32 v{t+2}, v{V_G}, 1, s29")
            else:
                assert self.R == 64
                if self.native:
                    A(f"v_lshlrev_b32 v{t+2}, 1, v{V_G}")
                else:
                    A(f"s_and_b32 s29, s{s_lw}, 1")
                    A("s_lshl_b32 s29, s29, 2")
                    A(f"v_and_b32 v{t+2}, 1, v{V_G}")
                    A(f"v_lshl_add_u32 v{t+2}, v{t+2}, 1, s29")
            A(f"v_xor_b32 v{t+1}, v{t+1}, v{t+2}")
            A(f"v_mul_u32_u24 v{t}, {self.ld}, v{t}")
            A(f"v_lshl_add_u32 v{t}, v{t+1}, 4, v{t}")
            tile_stride = getattr(self, "tile_stride", None)
            if tile_stride is None:
                tile_stride = self.R * self.ld if self.kind == "rm" else self.R * 2
            A(f"s_mul_i32 s28, s{self.tile}, {tile_stride}")
            A(f"s_mul_i32 s29, s{s_lw}, {rpp * self.ld}")
            A("s_add_u32 s28, s28, s29")
            if self.base: A(f"s_add_u32 s28, s28, {self.base}")
            if self.extra is not None: A(f"s_add_u32 s28, s28, s{self.extra}")
            A(f"v_add_u32 v{v0}, s28, v{t}")
            A(f"s_lshl_b32 s{s_m0}, s{s_lw}, 10")
            if ldsoff: A(f"s_add_u32 s{s_m0}, s{s_m0}, {ldsoff}")
            per = 4 // NL
            self.imm = [(i % per) * NL * 1024 for i in range(cnt)]
            self.m0add = [(i - i % per) * NL * 1024 for i in range(cnt)]
            step = NL * rpp * self.ld
        alt = self.kind == "km" and self.R == 128 and NL == 2
        if alt:
            A(f"v_xor_b32 v{t}, 128, v{v0}")
        for i in range(1, cnt):
            A(f"v_add_u32 v{self.voff[i]}, {i * step - self.imm[i]}, v{t if (alt and i & 1) else v0}")

    def issue(self, A, s_k):
        last = None
        for i in range(self.cnt):
            if self.m0add[i] != last:
                A(f"s_add_u32 m0, s{self.s_m0}, {self.m0add[i]}")
                A("s_nop 0")
                last = self.m0add[i]
            A(f"buffer_load_dwordx4 v{self.voff[i]}, s[{self.srd}:{self.srd+3}], s{s_k} offen offset:{self.imm[i]} lds")

    def consumer_setup(self, A, va, nfr, s_wi, ldsoff):
        self.nfr = nfr; t = va.tmp
        def add_wave(reg, mul, const):
            if s_wi is not None:
                A(f"s_mul_i32 s28, s{s_wi}, {mul}")
                if const: A(f"s_add_u32 s28, s28, {const}")
                A(f"v_add_u32 v{reg}, s28, v{reg}")
            elif const:
                A(f"v_add_u32 v{reg}, {const}, v{reg}")
        if self.kind == "fm":
            self.rd = [va()]
            A(f"v_lshlrev_b32 v{self.rd[0]}, 4, v{V_LANE}")
            add_wave(self.rd[0], nfr * 2048, ldsoff)
        elif self.kind == "rm":
            A(f"v_lshrrev_b32 v{t}, 1, v{V_R}")
            A(f"v_lshlrev_b32 v{t+1}, 7, v{V_R}")
            add_wave(t + 1, nfr * 2048, ldsoff)
            if not self.native:
                self.rd = [va(), va()]
                A(f"v_xor_b32 v{t}, v{t}, v{V_G}")
                A(f"v_lshl_add_u32 v{self.rd[0]}, v{t}, 4, v{t+1}")
                A(f"v_xor_b32 v{self.rd[1]}, 64, v{self.rd[0]}")
            else:
                self.rd = [va() for _ in range(4)]
                A(f"v_lshrrev_b32 v{t+2}, 1, v{V_G}")
                A(f"v_xor_b32 v{t}, v{t}, v{t+2}")
                A(f"v_lshl_add_u32 v{t+1}, v{t}, 4, v{t+1}")
                A(f"v_and_b32 v{t+2}, 1, v{V_G}")
                A(f"v_lshl_add_u32 v{self.rd[0]}, v{t+2}, 3, v{t+1}")
                for j in range(1, 4):
                    A(f"v_xor_b32 v{self.rd[j]}, {32 * j}, v{self.rd[0]}")
        else:
            pitch = self.R * 2
            self.rd = [va() for _ in range(nfr)]
            A(f"v_bfe_u32 v{t}, v{V_LANE}, 2, 2")
            A(f"v_and_b32 v{t+1}, 1, v{V_G}")
            if self.R == 128:
                A(f"v_lshl_add_u32 v{t+1}, v{t+1}, 2, v{t}")
            else:
                A(f"v_lshrrev_b32 v{t+2}, 1, v{t}")
                A(f"v_lshl_add_u32 v{t+1}, v{t+1}, 1, v{t+2}")
            A(f"v_lshl_add_u32 v{t}, v{V_G}, {2 if self.native else 3}, v{t}")
            A(f"v_lshlrev_b32 v{t}, {pitch.bit_length() - 1}, v{t}")
            A(f"v_and_b32 v{t+2}, 3, v{V_LANE}")
            A(f"v_lshl_add_u32 v{t}, v{t+2}, 3, v{t}")
            if ldsoff: A(f"v_add_u32 v{t}, {ldsoff}, v{t}")
            if s_wi is not None:
                assert nfr & (nfr - 1) == 0
                A(f"s_mul_i32 s28, s{s_wi}, {nfr}")
                A(f"v_xor_b32 v{t+1}, s28, v{t+1}")
            for f in range(nfr):
                A(f"v_xor_b32 v{t+2}, {f}, v{t+1}")
                A(f"v_lshl_add_u32 v{self.rd[f]}, v{t+2}, 5, v{t}")

    def reads(self, dst, f, kk):
        if self.kind == "fm":
            return [f"ds_read_b128 {vr(dst, 4)}, v{self.rd[0]} offset:{f * 2048 + kk * 1024}"]
        if self.kind == "rm":
            if not self.native:
                return [f"ds_read_b128 {vr(dst, 4)}, v{self.rd[kk]} offset:{f * 2048}"]
            return [f"ds_read_b64 {vr(dst + 2 * hh, 2)}, v{self.rd[2 * kk + hh]} offset:{f * 2048}" for hh in range(2)]
        pitch = self.R * 2
        hs = 16 if self.native else 4
        return [f"ds_read_b64_tr_b16 {vr(dst + 2 * hh, 2)}, v{self.rd[f]} offset:{(32 * kk + hs * hh) * pitch}" for hh in range(2)]

class Gemm:
    def __init__(self, name, opM, opN, WM, WN, n, NS, NL, rot=False, PRE=None):
        self.rot = rot; self.PRE = PRE or min(NS - 1, int(os.environ.get("PRE", "9")))
        self.name = name; self.M = opM; self.N = opN; self.WM = WM; self.WN = WN
        self.a = opM.R // 16 // WM; self.b = opN.R // 16 // WN
        self.n = n; self.NS = NS; self.NL = NL
        self.stage = opM.bytes + opN.bytes
        self.lds = self.stage * NS
        self.vhi = 0

    def emit_split(self, A):
        A(f"s_cmp_ge_u32 s{S_W}, 4")
        A(f"s_cbranch_scc1 L_{self.name}_ld")
        if self.WM * self.WN < 4:
            A(f"s_cmp_ge_u32 s{S_W}, {self.WM * self.WN}")
            A(f"s_cbranch_scc1 L_{self.name}_end")

    def emit_loader(self, A, after=None, srds=None):
        nm = self.name; NS = self.NS; n = self.n; NL = self.NL
        LA = NS - 1
        A.label(f"L_{nm}_ld")
        if NL < 4:
            A(f"s_cmp_ge_u32 s{S_W}, {4 + NL}")
            A(f"s_cbranch_scc1 L_{nm}_end")
        va = VAlloc(8); va.tmp = 4
        A(f"s_sub_u32 s60, s{S_W}, 4")
        self.M.loader_setup(A, va, NL, 60, 61, 0)
        self.N.loader_setup(A, va, NL, 60, 62, self.M.bytes)
        self.lva = va
        rot = self.rot
        if rot:
            A(f"s_mul_i32 s63, s{S_ROT}, {self.M.kstep}")
            A(f"s_mul_i32 s64, s{S_ROT}, {self.N.kstep}")
            A(f"s_mov_b32 s65, s{S_ROT}")
        else:
            A("s_mov_b32 s63, 0")
            if self.M.kstep != self.N.kstep: A("s_mov_b32 s64, 0")
        skn = 64 if (rot or self.M.kstep != self.N.kstep) else 63
        A("s_mov_b32 s66, 0")
        A("s_mov_b32 s67, 0")
        A(f"s_mov_b32 s69, {self.stage}")
        ops = self.M.cnt + self.N.cnt
        self.ops = ops
        A("s_waitcnt lgkmcnt(0)")
        srds(A)
        def issue():
            self.M.issue(A, 63); self.N.issue(A, skn)
            A(f"s_add_u32 s63, s63, {self.M.kstep}")
            if skn == 64: A(f"s_add_u32 s64, s64, {self.N.kstep}")
            if rot:
                A("s_add_u32 s65, s65, 1")
                A(f"s_cmp_eq_u32 s65, {n}")
                A("s_cselect_b32 s63, 0, s63")
                A("s_cselect_b32 s64, 0, s64")
                A("s_cselect_b32 s65, 0, s65")
            A("s_add_u32 s66, s66, 1")
            A(f"s_cmp_eq_u32 s66, {NS}")
            A(f"s_cselect_b32 s68, {(-(NS - 1) * self.stage) & 0xffffffff}, s69")
            A("s_cselect_b32 s66, 0, s66")
            A("s_add_u32 s61, s61, s68")
            A("s_add_u32 s62, s62, s68")
            A("s_add_u32 s67, s67, 1")
        A.stamp(1)
        PRE = self.PRE
        assert PRE <= LA
        A("s_mov_b32 s70, 0")
        A("s_mov_b32 s71, 2")
        A.label(f"L_{nm}_lloop")
        issue()
        A(f"s_cmp_eq_u32 s67, {n}")
        A(f"s_cbranch_scc1 L_{nm}_ltail")
        A("s_cmp_lt_u32 s67, s71")
        A(f"s_cbranch_scc1 L_{nm}_lloop")
        for b in range(PRE - 2):
            A(f"s_cmp_lg_u32 s70, {b}")
            A(f"s_cbranch_scc1 L_{nm}_r{b}")
            A(f"s_waitcnt vmcnt({(1 + b) * ops})")
            A("s_add_u32 s71, s71, 1")
            A.label(f"L_{nm}_r{b}")
        A(f"s_waitcnt vmcnt({(PRE - 1) * ops})")
        A("s_barrier")
        A("s_add_u32 s70, s70, 1")
        A("s_add_u32 s71, s71, 1")
        A(f"s_branch L_{nm}_lloop")
        A.label(f"L_{nm}_ltail")
        A.stamp(3)
        extra = 0
        if after: extra = after(A) or 0
        for rho in range(n - PRE, n):
            A(f"s_waitcnt vmcnt({min(63, (n - 1 - rho) * ops + extra)})")
            A("s_barrier")
        self.vhi = max(self.vhi, va.hi)

    def emit_consumer(self, A, va, pre=None, nhook=None, srds=None):
        nm = self.name; a, b = self.a, self.b
        s_wm = s_wn = None
        if self.WM > 1 and self.WN > 1:
            A(f"s_and_b32 s60, s{S_W}, 1"); A(f"s_lshr_b32 s61, s{S_W}, 1"); s_wm, s_wn = 60, 61
        elif self.WM > 1: s_wm = S_W
        else: s_wn = S_W
        self.s_wm, self.s_wn = s_wm, s_wn
        self.M.consumer_setup(A, va, a, s_wm, 0)
        self.N.consumer_setup(A, va, b, s_wn, self.M.bytes)
        fb = va(8 * (a + b), 4)
        accb = va(4 * a * b, 4)
        self.fb = fb; self.accb = accb
        mf = lambda kk, i: fb + 4 * (kk * (a + b) + i)
        nf = lambda kk, f: fb + 4 * (kk * (a + b) + a + f)
        self.acc = lambda i, f: accb + 4 * (i * b + f)
        for j in range(4 * a * b): A(f"v_mov_b32 v{accb + j}, 0")
        A("s_mov_b32 s66, 0"); A("s_mov_b32 s67, 0")
        A(f"s_mov_b32 s69, {self.stage}")
        A("s_waitcnt lgkmcnt(0)")
        srds(A)
        if pre: pre(A)
        T = Lgkm(A)
        if a >= b: order = [(i, f) for i in range(a) for f in range(b)]
        else: order = [(i, f) for f in range(b) for i in range(a)]
        def readlist(kk):
            seen = []; out = []
            for (i, f) in order:
                for tag in (("m", kk, i), ("n", kk, f)):
                    if tag not in seen:
                        seen.append(tag)
                        ins = self.M.reads(mf(kk, i), i, kk) if tag[0] == "m" else self.N.reads(nf(kk, f), f, kk)
                        out += [(tag, x) for x in ins]
            return out
        def phase(kk_mfma, kk_read, extra_reads=(), tailops=()):
            rd = list(extra_reads) + (readlist(kk_read) if kk_read is not None else [])
            nmf = len(order)
            per = -(-len(rd) // max(1, (nmf * 2) // 3))
            ri = 0
            hooked = set()
            tl = list(tailops)
            for idx, (i, f) in enumerate(order):
                T.need(("m", kk_mfma, i)); T.need(("n", kk_mfma, f))
                if nhook and f not in hooked:
                    hooked.add(f); nhook(A, T, nf(kk_mfma, f), f, kk_mfma)
                A(f"v_mfma_f32_16x16x32_bf16 {vr(self.acc(i, f), 4)}, {vr(mf(kk_mfma, i), 4)}, {vr(nf(kk_mfma, f), 4)}, {vr(self.acc(i, f), 4)}")
                if ri < len(rd):
                    for _ in range(per):
                        if ri < len(rd):
                            A(rd[ri][1]); T.issue(rd[ri][0]); ri += 1
                elif idx < nmf - 1:
                    left = nmf - 1 - idx
                    for _ in range(-(-len(tl) // left)):
                        A(tl.pop(0))
            assert ri == len(rd)
            for x in tl: A(x)
        xr = getattr(self, "step_reads", lambda: [])
        A.stamp(1)
        A("s_barrier")
        A.stamp(2)
        for tag, x in list(xr()) + readlist(0):
            A(x); T.issue(tag)
        state0 = list(T.q)
        if NOREAD and A.kid == KSEL:
            for tag, x in readlist(1): A(x)
        A.inloop = True
        book = ["s_add_u32 s66, s66, 1", f"s_cmp_eq_u32 s66, {self.NS}",
                f"s_cselect_b32 s68, {(-(self.NS - 1) * self.stage) & 0xffffffff}, s69", "s_cselect_b32 s66, 0, s66"]
        book += [f"v_add_u32 v{r}, s68, v{r}" for r in self.M.rd + self.N.rd]
        book += getattr(self, "step_adv", [])
        book += ["s_add_u32 s67, s67, 1", f"s_cmp_eq_u32 s67, {self.n}"]
        A.label(f"L_{nm}_cloop")
        phase(0, 1, tailops=book)
        stateA = list(T.q)
        A(f"s_cbranch_scc1 L_{nm}_ctail")
        A("s_waitcnt lgkmcnt(0)")
        A("s_barrier")
        T.clear()
        phase(1, 0, xr())
        assert T.q == state0, (T.q, state0)
        A(f"s_branch L_{nm}_cloop")
        A.label(f"L_{nm}_ctail")
        T.q = stateA
        phase(1, None)
        A.inloop = False
        A.stamp(3)
        self.vhi = max(self.vhi, va.hi)

    def fm_store_base(self, A, dst_off, NRB, s_nblk0, s_kb0):
        a, b = self.a, self.b
        A(f"s_mov_b32 s28, s{s_nblk0}")
        if self.s_wn is not None:
            A(f"s_mul_i32 s29, s{self.s_wn}, {b}"); A("s_add_u32 s28, s28, s29")
        A("s_lshl_b32 s28, s28, 11")
        A(f"s_mov_b32 s32, s{s_kb0}")
        if self.s_wm is not None:
            A(f"s_mul_i32 s29, s{self.s_wm}, {a // 2}"); A("s_add_u32 s32, s32, s29")
        A("s_lshr_b32 s29, s32, 1")
        A(f"s_mul_i32 s29, s29, {NRB * 2048}")
        A("s_add_u32 s28, s28, s29")
        if a == 2:
            A("s_and_b32 s29, s32, 1"); A("s_lshl_b32 s29, s29, 10"); A("s_add_u32 s28, s28, s29")
        else: assert a == 4
        A(f"s_add_u32 s28, s28, {dst_off}")

    def epi_fm(self, A, va, dst_off, NRB, s_nblk0, s_kb0, srdo=SRD_O):
        a, b = self.a, self.b
        t = va.tmp
        self.fm_store_base(A, dst_off, NRB, s_nblk0, s_kb0)
        A(f"v_lshlrev_b32 v{t}, 4, v{V_LANE}")
        A("s_nop 1")
        k = 0
        for f in range(b):
            for q in range(a // 2):
                d = self.fb + 4 * (k % (2 * (a + b))); k += 1
                r0, r1 = self.acc(2 * q, f), self.acc(2 * q + 1, f)
                A(f"v_cvt_pk_bf16_f32 v{d}, v{r0}, v{r0+1}")
                A(f"v_cvt_pk_bf16_f32 v{d+1}, v{r0+2}, v{r0+3}")
                A(f"v_cvt_pk_bf16_f32 v{d+2}, v{r1}, v{r1+1}")
                A(f"v_cvt_pk_bf16_f32 v{d+3}, v{r1+2}, v{r1+3}")
                A(f"buffer_store_dwordx4 {vr(d, 4)}, v{t}, s[{srdo}:{srdo+3}], s28 offen offset:{(f % 2) * 2048 + q * 1024}")
            if f % 2 == 1 and f < b - 1: A("s_add_u32 s28, s28, 4096")

    def epi_k16(self, A, va, dst_off, KT, s_nblk0, s_kt0, srdo=SRD_O, wm_stride=None):
        a, b = self.a, self.b
        t = va.tmp
        A(f"s_mov_b32 s28, s{s_nblk0}")
        if self.s_wn is not None:
            A(f"s_mul_i32 s29, s{self.s_wn}, {b}"); A("s_add_u32 s28, s28, s29")
        A(f"s_mul_i32 s28, s28, {KT}")
        if s_kt0 is not None: A(f"s_add_u32 s28, s28, s{s_kt0}")
        if self.s_wm is not None:
            A(f"s_mul_i32 s29, s{self.s_wm}, {a if wm_stride is None else wm_stride}"); A("s_add_u32 s28, s28, s29")
        A("s_lshl_b32 s28, s28, 9")
        A(f"s_add_u32 s28, s28, {dst_off}")
        A(f"v_lshlrev_b32 v{t}, 3, v{V_LANE}")
        A("s_nop 4")
        for f in range(b):
            for i in range(a):
                r0 = self.acc(i, f)
                A(f"v_cvt_pk_bf16_f32 v{r0}, v{r0}, v{r0+1}")
                A(f"v_cvt_pk_bf16_f32 v{r0+1}, v{r0+2}, v{r0+3}")
                A(f"buffer_store_dwordx2 {vr(r0, 2)}, v{t}, s[{srdo}:{srdo+3}], s28 offen offset:{i * 512}")
            if f < b - 1: A(f"s_add_u32 s28, s28, {KT * 512}")

def kernel_prologue(A, name, nwg):
    A.raw(f".globl {name}\n.p2align 8\n.type {name},@function\n{name}:")
    A.kid += 1
    if STAMP:
        A.stamp(0)
        A("s_mov_b32 s78, s2")
        for j in (82, 84, 86): A(f"s_mov_b32 s{j}, 0")
    A("s_load_dwordx16 s[36:51], s[0:1], 0")
    A("s_load_dwordx8 s[52:59], s[0:1], 64")
    A("v_lshrrev_b32 v3, 6, v0")
    A(f"v_and_b32 v{V_LANE}, 63, v0")
    A(f"v_readfirstlane_b32 s{S_W}, v3")
    A(f"v_and_b32 v{V_R}, 15, v{V_LANE}")
    A(f"v_lshrrev_b32 v{V_G}, 4, v{V_LANE}")

def kernel_desc(name, vgpr, sgpr=100):
    acc = (vgpr + 3) // 4 * 4
    return f'''.amdhsa_kernel {name}
  .amdhsa_next_free_vgpr {acc}
  .amdhsa_next_free_sgpr {sgpr}
  .amdhsa_accum_offset {acc}
  .amdhsa_group_segment_fixed_size 0
  .amdhsa_kernarg_size 96
  .amdhsa_user_sgpr_count 2
  .amdhsa_user_sgpr_kernarg_segment_ptr 1
  .amdhsa_system_sgpr_workgroup_id_x 1
.end_amdhsa_kernel
'''
```

```python
from core import *
from layout import *
TOUCH = int(os.environ.get('TOUCH', '2'))

def xcd_rot(A):
    A("s_and_b32 s30, s2, 7")
    A("s_mul_i32 s30, s30, 7")
    sdivmod(A, 31, S_ROT, 30, 18)

ROTMODE = int(os.environ.get("ROTMODE", "2"))
def job_A(A):
    nm = "jA"
    A.label(f"L_{nm}")
    sdivmod(A, 30, 31, 76, 3)
    sdivmod(A, S_TN, S_TM, S_T, 3)
    if ROTMODE == 2:
        A(f"s_mul_i32 s32, s{S_TM}, 6")
        A(f"s_mul_i32 s33, s{S_TN}, 3")
        A("s_add_u32 s32, s32, s33")
        A("s_add_u32 s32, s32, s76")
        sdivmod(A, 33, S_ROT, 32, 18)
    else:
        A(f"s_mul_i32 s{S_ROT}, s76, {3 if ROTMODE else 0}")
    A("s_mul_i32 s31, s31, 3")
    A(f"s_add_u32 s{S_TM}, s{S_TM}, s31")
    A("s_mul_i32 s30, s30, 6")
    A(f"s_add_u32 s{S_TN}, s{S_TN}, s30")
    g = Gemm(nm, Op("rm", 128, SRD_M, S_TM, ld=6912), Op("rm", 96, SRD_M, S_TN, ld=6912, base=2304), 2, 2, 18, 5, 4, rot=True)
    g.emit_split(A)
    va = VAlloc(8); va.tmp = 4
    g.emit_consumer(A, va, srds=lambda A: srd(A, SRD_O, P_WS, WS_USED))
    A(f"s_mul_i32 s30, s{S_TN}, 6"); A(f"s_lshl_b32 s31, s{S_TM}, 2")
    g.epi_fm(A, va, AT, 72, 30, 31)
    A("s_endpgm")
    g.emit_loader(A, srds=lambda A: srd(A, SRD_M, P_WQKV, 1152 * 6912))
    A.label(f"L_{nm}_end")
    A("s_endpgm")
    return g

def job_kv(A):
    nm = "jkv"
    A.label(f"L_{nm}")
    sdivmod(A, S_TM, S_TN, S_T, 2)
    if ROTMODE == 2:
        A(f"s_mul_i32 s32, s{S_TN}, 9")
        A(f"s_add_u32 s{S_ROT}, s32, s{S_TM}")
    else:
        A(f"s_mov_b32 s{S_ROT}, 0")
    A("s_sub_u32 s30, s76, 6")
    A("s_mul_i32 s30, s30, 9")
    A(f"s_add_u32 s{S_TM}, s{S_TM}, s30")
    opN = Op("rm", 80, SRD_N, S_TN, ld=2304); opN.tile_stride = 77 * 2304
    g = Gemm(nm, Op("km", 128, SRD_M, S_TM, ld=4608), opN, 4, 1, 18, 5, 2, rot=True)
    g.emit_split(A)
    va = VAlloc(8); va.tmp = 4
    g.emit_consumer(A, va, srds=lambda A: srd(A, SRD_O, P_WS, WS_USED))
    A(f"s_mul_i32 s30, s{S_TN}, 5"); A(f"s_lshl_b32 s31, s{S_TM}, 2")
    g.epi_fm(A, va, KV, 10, 30, 31)
    A("s_endpgm")
    def srds(A):
        srd(A, SRD_M, P_WKVC, 1152 * 4608)
        srd(A, SRD_N, P_Y, 154 * 2304)
    g.emit_loader(A, srds=srds)
    A.label(f"L_{nm}_end")
    A("s_endpgm")
    return g

def xlane_sum_bits2345(A, v, t):
    A("s_nop 1")
    A(f"v_add_f32_dpp v{v}, v{v}, v{v} row_ror:4 row_mask:0xf bank_mask:0xf")
    A("s_nop 1")
    A(f"v_add_f32_dpp v{v}, v{v}, v{v} row_ror:8 row_mask:0xf bank_mask:0xf")
    A(f"v_mov_b32 v{t}, v{v}")
    A("s_nop 1")
    A(f"v_permlane16_swap_b32 v{v}, v{t}")
    A(f"v_add_f32 v{v}, v{v}, v{t}")
    A(f"v_mov_b32 v{t}, v{v}")
    A("s_nop 1")
    A(f"v_permlane32_swap_b32 v{v}, v{t}")
    A(f"v_add_f32 v{v}, v{v}, v{t}")

def job_ln(A):
    A.label("L_jln")
    A(f"s_lshl_b32 s5, s{S_T}, 3")
    A(f"s_add_u32 s5, s5, s{S_W}")
    A(f"v_and_b32 v4, 1, v{V_G}")
    A("v_lshlrev_b32 v4, 1, v4")
    A(f"v_and_b32 v5, 2, v{V_G}")
    A("v_lshl_or_b32 v4, v5, 2, v4")
    A(f"v_xor_b32 v4, v4, v{V_R}")
    A(f"v_mul_u32_u24 v5, 2304, v{V_G}")
    A("v_lshl_add_u32 v4, v4, 4, v5")
    A("s_mul_i32 s6, s5, 9216")
    A(f"s_mul_i32 s7, s{S_W}, 9216")
    A("s_waitcnt lgkmcnt(0)")
    srd(A, SRD_M, P_X, 2048 * 2304)
    srd(A, SRD_O, P_WS, WS_USED)
    for it in range(9):
        A(f"s_add_u32 m0, s7, {it * 1024}")
        A(f"s_add_u32 s28, s6, {it * 256}")
        A(f"buffer_load_dwordx4 v4, s[{SRD_M}:{SRD_M+3}], s28 offen lds")
    A(f"v_and_b32 v4, 3, v{V_LANE}")
    A("v_and_b32 v5, 1, v4")
    A("v_lshlrev_b32 v5, 1, v5")
    A("v_and_b32 v6, 2, v4")
    A("v_lshl_or_b32 v5, v6, 2, v5")
    A(f"v_bfe_u32 v6, v{V_LANE}, 3, 1")
    A(f"v_lshl_add_u32 v6, v{V_G}, 2, v6")
    A("v_xor_b32 v5, v5, v6")
    A("v_lshlrev_b32 v5, 4, v5")
    A("v_lshl_add_u32 v5, v4, 8, v5")
    A(f"v_bfe_u32 v6, v{V_LANE}, 2, 1")
    A("v_lshl_add_u32 v5, v6, 3, v5")
    A("v_add_u32 v5, s7, v5")
    A("v_xor_b32 v6, 32, v5")
    A(f"v_bfe_u32 v7, v{V_LANE}, 2, 2")
    A("v_lshl_add_u32 v7, v7, 4, v4")
    A("s_and_b32 s28, s5, 3")
    A("s_lshl_b32 s28, s28, 2")
    A("v_add_u32 v7, s28, v7")
    A("v_lshlrev_b32 v7, 4, v7")
    A(f"v_and_b32 v8, 1, v{V_G}")
    A("v_lshl_add_u32 v7, v8, 10, v7")
    A(f"v_lshrrev_b32 v8, 1, v{V_G}")
    A("v_lshl_add_u32 v7, v8, 18, v7")
    A("s_lshr_b32 s28, s5, 2")
    A("s_lshl_b32 s28, s28, 11")
    A(f"s_add_u32 s28, s28, {H}")
    PK = 84; F = 12
    A("s_mov_b32 s30, 0xffff0000")
    for it in range(9):
        A(f"s_waitcnt vmcnt({8 - it})")
        A(f"ds_read_b64 {vr(PK + 4 * it, 2)}, v5 offset:{it * 1024}")
        A(f"ds_read_b64 {vr(PK + 4 * it + 2, 2)}, v6 offset:{it * 1024}")
    if TOUCH & 2:
        for m, (ptr, size) in enumerate(((P_WQC, 1152 * 2304), (P_WOC, 1152 * 2304), (P_WO, 1152 * 2304), (P_WQKV, 1152 * 6912))):
            A(f"s_add_u32 s29, s5, {m * 128}")
            A("s_and_b32 s29, s29, 511")
            A("s_lshl_b32 s29, s29, 6")
            A(f"v_add_u32 v8, s29, v{V_LANE}")
            srd(A, SRD_F, ptr, size)
            if ptr == P_WQKV:
                A("s_mov_b32 s29, 58255")
                A("v_mul_lo_u32 v9, v8, s29")
                A("v_lshrrev_b32 v9, 20, v9")
                A(f"v_mul_u32_u24 v9, {6912 - 2304}, v9")
                A("v_lshl_add_u32 v8, v8, 7, v9")
                A("v_add_u32 v8, 4608, v8")
            else:
                A("v_lshlrev_b32 v8, 7, v8")
            A(f"buffer_load_dword v3, v8, s[{SRD_F}:{SRD_F+3}], 0 offen")
    A("v_mov_b32 v8, 0"); A("v_mov_b32 v9, 0")
    for it in range(9):
        A(f"s_waitcnt lgkmcnt({min(15, 16 - 2 * it)})")
        for j in range(4):
            p = PK + 4 * it + j; f = F + 8 * it + 2 * j
            A(f"v_lshlrev_b32 v{f}, 16, v{p}")
            A(f"v_and_b32 v{f+1}, s30, v{p}")
            A(f"v_pk_add_f32 v[8:9], v[8:9], {vr(f, 2)}")
    A("v_add_f32 v8, v8, v9")
    xlane_sum_bits2345(A, 8, 9)
    A(f"v_mul_f32 v8, {-1.0 / D!r}, v8")
    A("v_mov_b32 v9, v8")
    A("v_mov_b32 v10, 0"); A("v_mov_b32 v11, 0")
    for j in range(36):
        f = F + 2 * j
        A(f"v_pk_add_f32 {vr(f, 2)}, {vr(f, 2)}, v[8:9]")
        A(f"v_pk_fma_f32 v[10:11], {vr(f, 2)}, {vr(f, 2)}, v[10:11]")
    A("v_add_f32 v10, v10, v11")
    xlane_sum_bits2345(A, 10, 11)
    A("v_mov_b32 v11, 0x3727c5ac")
    A(f"v_fmac_f32 v11, {1.0 / D!r}, v10")
    A("v_rsq_f32 v10, v11")
    srd(A, SRD_E, P_DBG, 256)
    A("v_mov_b32 v11, v10")
    for j in range(36):
        f = F + 2 * j
        A(f"v_pk_mul_f32 {vr(f, 2)}, {vr(f, 2)}, v[10:11]")
    A(f"s_cmp_lg_u32 s{S_W}, 0")
    A("s_cbranch_scc1 L_jln_got")
    A("v_mov_b32 v4, 128")
    A("s_mov_b32 s31, 0")
    A.label("L_jln_poll")
    A(f"buffer_load_dword v8, v4, s[{SRD_E}:{SRD_E+3}], 0 offen sc1")
    A("s_add_u32 s31, s31, 1")
    A("s_waitcnt vmcnt(0)")
    A("v_cmp_eq_u32 vcc, 0, v8")
    A("s_cmp_gt_u32 s31, 0x100000")
    A("s_cbranch_scc1 L_jln_got")
    A("s_cbranch_vccz L_jln_got")
    A("s_sleep 1")
    A("s_branch L_jln_poll")
    A.label("L_jln_got")
    A("s_barrier")
    A(f"s_lshr_b32 s29, s{S_T}, 5")
    A(f"s_mul_i32 s29, s29, {3456 * 4}")
    A(f"s_add_u32 s29, s29, {MOD}")
    A(f"s_mul_i32 s31, s{S_W}, 1152")
    A(f"v_lshl_add_u32 v4, v{V_LANE}, 4, s31")
    A(f"v_min_u32 v5, 7, v{V_LANE}")
    A("v_lshl_add_u32 v5, v5, 4, s31")
    A("v_add_u32 v5, 1024, v5")
    for p in range(2):
        A(f"buffer_load_dwordx4 {vr(PK + 8 * p, 4)}, v4, s[{SRD_O}:{SRD_O+3}], s29 offen sc1")
        A(f"buffer_load_dwordx4 {vr(PK + 8 * p + 4, 4)}, v5, s[{SRD_O}:{SRD_O+3}], s29 offen sc1")
        if p < 1: A(f"s_add_u32 s29, s29, {2 * 3456 * 4}")
    A(f"s_cmp_ge_u32 s{S_W}, 4")
    A("s_cselect_b32 s31, 1.0, 0")
    A("s_waitcnt vmcnt(0)")
    for j in range(4): A(f"v_pk_add_f32 {vr(PK + 2 * j, 2)}, {vr(PK + 2 * j, 2)}, {vr(PK + 8 + 2 * j, 2)}")
    for rnd in range(2):
        for j in range(4): A(f"v_cvt_pk_bf16_f32 v{PK + 8 + j}, v{PK + 2 * j}, v{PK + 2 * j + 1}")
        for j in range(4):
            A(f"v_lshlrev_b32 v{PK + 2 * j}, 16, v{PK + 8 + j}")
            A(f"v_and_b32 v{PK + 2 * j + 1}, s30, v{PK + 8 + j}")
        if rnd == 0:
            for j in range(8): A(f"v_add_f32 v{PK + j}, s31, v{PK + j}")
    A(f"ds_write_b128 v4, {vr(PK, 4)}")
    A(f"ds_write_b128 v5, {vr(PK + 4, 4)}")
    A(f"v_bfe_u32 v6, v{V_LANE}, 2, 2")
    A("v_lshlrev_b32 v6, 4, v6")
    A(f"v_lshl_add_u32 v6, v{V_G}, 7, v6")
    A("s_waitcnt lgkmcnt(0)")
    A("s_barrier")
    TBs = [PK, PK + 16]
    def tread(it):
        for q, off in enumerate((4608, 4608 + 64, 0, 64)):
            A(f"ds_read_b128 {vr(TBs[it % 2] + 4 * q, 4)}, v6 offset:{off + it * 512}")
    tread(0)
    for it in range(9):
        if it < 8: tread(it + 1)
        A(f"s_waitcnt lgkmcnt({4 if it < 8 else 0})")
        tb = TBs[it % 2]; f = F + 8 * it
        for j in range(4):
            A(f"v_pk_fma_f32 {vr(f + 2 * j, 2)}, {vr(f + 2 * j, 2)}, {vr(tb + 2 * j, 2)}, {vr(tb + 8 + 2 * j, 2)}")
        for j in range(4):
            A(f"v_cvt_pk_bf16_f32 v{f + j}, v{f + 2 * j}, v{f + 2 * j + 1}")
        A(f"buffer_store_dwordx4 {vr(f, 4)}, v7, s[{SRD_O}:{SRD_O+3}], s28 offen")
        if it < 8: A(f"s_add_u32 s28, s28, {2 * 128 * 2048}")
    A("s_endpgm")
    return 120

def job_mod(A):
    A.label("L_jmod")
    sdivmod(A, 60, 61, S_T, 2)
    A(f"v_mul_u32_u24 v4, 13824, v{V_G}")
    A(f"v_lshl_add_u32 v4, v{V_R}, 4, v4")
    A("s_lshl_b32 s62, s61, 3")
    A(f"s_add_u32 s62, s62, s{S_W}")
    A(f"v_min_u32 v6, 17, v{V_LANE}")
    A("v_lshlrev_b32 v7, 3, v6")
    A("s_mul_i32 s29, s62, 144")
    A("s_waitcnt lgkmcnt(0)")
    srd(A, SRD_N, P_C, 2 * 2304)
    srd(A, SRD_M, P_WMOD, 1152 * 13824)
    A(f"buffer_load_dwordx2 v[8:9], v7, s[{SRD_N}:{SRD_N+3}], s29 offen")
    A(f"buffer_load_dwordx2 v[10:11], v7, s[{SRD_N}:{SRD_N+3}], s29 offen offset:2304")
    W = 48; NI = 18; ACC = 24; SP = 120
    def wloads():
        A(f"s_mul_i32 s28, s62, {72 * 13824}")
        A("s_lshl_b32 s29, s60, 8")
        A("s_add_u32 s28, s28, s29")
        for it in range(NI):
            A(f"buffer_load_dwordx4 {vr(W + 4 * it, 4)}, v4, s[{SRD_M}:{SRD_M+3}], s28 offen")
            if it < NI - 1: A(f"s_add_u32 s28, s28, {4 * 13824}")
    wloads()
    srd(A, SRD_O, P_WS, WS_USED)
    srd(A, SRD_E, P_DBG, 256)
    A("s_mov_b32 s30, 0xffff0000")
    A(f"s_waitcnt vmcnt({NI})")
    for b in range(2):
        for j in range(2):
            A(f"v_lshlrev_b32 v{12 + 4 * j + b}, 16, v{8 + 2 * b + j}")
            A(f"v_and_b32 v{12 + 4 * j + 2 + b}, s30, v{8 + 2 * b + j}")
    for j in range(8):
        A(f"v_mul_f32 v{40 + j}, {-1.4426950408889634!r}, v{12 + j}")
    for j in range(8): A(f"v_exp_f32 v{40 + j}, v{40 + j}")
    for j in range(8): A(f"v_add_f32 v{40 + j}, 1.0, v{40 + j}")
    for j in range(8): A(f"v_rcp_f32 v{40 + j}, v{40 + j}")
    for j in range(8): A(f"v_mul_f32 v{12 + j}, v{12 + j}, v{40 + j}")
    for j in range(4):
        A(f"v_cvt_pk_bf16_f32 v20, v{12 + 2 * j}, v{13 + 2 * j}")
        A(f"v_lshlrev_b32 v{12 + 2 * j}, 16, v20")
        A(f"v_and_b32 v{13 + 2 * j}, s30, v20")
    A(f"s_mul_i32 s31, s{S_W}, 576")
    A("s_add_u32 s31, s31, 16384")
    A("v_lshl_add_u32 v6, v6, 5, s31")
    A("ds_write_b128 v6, v[12:15]")
    A("ds_write_b128 v6, v[16:19] offset:16")
    A(f"v_lshl_add_u32 v7, v{V_G}, 3, s31")
    A(f"v_lshlrev_b32 v5, 6, v{V_R}")
    A(f"v_lshl_add_u32 v5, v{V_G}, 4, v5")
    A(f"s_lshl_b32 s31, s{S_W}, 10")
    A("v_add_u32 v5, s31, v5")
    A("s_waitcnt lgkmcnt(0)")
    for it in range(NI): A(f"ds_read_b64 {vr(SP + 2 * it, 2)}, v7 offset:{it * 32}")
    A("s_mov_b32 s63, 0")
    A("s_waitcnt lgkmcnt(0)")
    A.label("L_jmod_pass")
    for j in range(16): A(f"v_mov_b32 v{ACC + j}, 0")
    for it in range(NI):
        sp = SP + 2 * it
        A(f"s_waitcnt vmcnt({NI - 1 - it})")
        for j in range(4):
            u = 40 + 2 * j
            A(f"v_lshlrev_b32 v{u}, 16, v{W + 4 * it + j}")
            A(f"v_and_b32 v{u+1}, s30, v{W + 4 * it + j}")
        for j in range(4):
            u = 40 + 2 * j; a0 = ACC + 4 * j
            A(f"v_pk_fma_f32 {vr(a0, 2)}, {vr(u, 2)}, {vr(sp, 2)}, {vr(a0, 2)} op_sel:[0,0,0] op_sel_hi:[0,1,1]")
            A(f"v_pk_fma_f32 {vr(a0 + 2, 2)}, {vr(u, 2)}, {vr(sp, 2)}, {vr(a0 + 2, 2)} op_sel:[1,0,0] op_sel_hi:[1,1,1]")
    A("s_mov_b32 s64, s60")
    A("s_nop 0")
    for j in range(8):
        A(f"v_permlane32_swap_b32 v{ACC + j}, v{ACC + 8 + j}")
    for j in range(8):
        A(f"v_add_f32 v{ACC + j}, v{ACC + j}, v{ACC + 8 + j}")
    A("s_nop 1")
    for j in range(4):
        A(f"v_permlane16_swap_b32 v{ACC + j}, v{ACC + 4 + j}")
    for j in range(4):
        A(f"v_add_f32 v{ACC + j}, v{ACC + j}, v{ACC + 4 + j}")
    A(f"ds_write_b128 v5, {vr(ACC, 4)}")
    A("s_waitcnt lgkmcnt(0)")
    A("s_barrier")
    A(f"s_cmp_lg_u32 s{S_W}, 0")
    A("s_cbranch_scc1 L_jmod_nf")
    A(f"v_lshlrev_b32 v7, 4, v{V_LANE}")
    A("s_lshl_b32 s31, s63, 13")
    A("v_add_u32 v7, s31, v7")
    for w in range(8): A(f"ds_read_b128 {vr(W + 4 * w, 4)}, v7 offset:{w * 1024}")
    A(f"v_lshlrev_b32 v6, 3, v{V_LANE}")
    A(f"s_mul_i32 s28, s61, {2 * 3456 * 4}")
    A("s_lshl_b32 s29, s64, 9")
    A("s_add_u32 s28, s28, s29")
    A(f"s_add_u32 s28, s28, {MOD}")
    A(f"s_add_u32 s29, s28, {3456 * 4}")
    A("s_waitcnt lgkmcnt(0)")
    for w in range(1, 8):
        for hh in range(2):
            A(f"v_pk_add_f32 {vr(W + 2 * hh, 2)}, {vr(W + 2 * hh, 2)}, {vr(W + 4 * w + 2 * hh, 2)}")
    A(f"v_mov_b32 v8, v{W}"); A(f"v_mov_b32 v9, v{W + 2}"); A(f"v_mov_b32 v10, v{W + 1}"); A(f"v_mov_b32 v11, v{W + 3}")
    A(f"buffer_store_dwordx2 v[8:9], v6, s[{SRD_O}:{SRD_O+3}], s28 offen sc1")
    A(f"buffer_store_dwordx2 v[10:11], v6, s[{SRD_O}:{SRD_O+3}], s29 offen sc1")
    A("s_cmp_lg_u32 s63, 0")
    A("s_cbranch_scc1 L_jmod_end")
    A("v_mov_b32 v12, 1")
    A("v_mov_b32 v13, 0")
    A("v_mov_b32 v14, 1")
    A("s_mov_b64 exec, 1")
    A("s_waitcnt vmcnt(0)")
    A(f"buffer_atomic_add v12, v13, s[{SRD_E}:{SRD_E+3}], 0 offen sc0 sc1")
    A("s_waitcnt vmcnt(0)")
    A("v_readfirstlane_b32 s29, v12")
    A("s_cmp_lg_u32 s29, 35")
    A("s_cbranch_scc1 L_jmod_nl")
    A(f"buffer_store_dword v14, v13, s[{SRD_E}:{SRD_E+3}], 0 offen offset:128 sc1")
    A.label("L_jmod_nl")
    A("s_mov_b64 exec, -1")
    A.label("L_jmod_nf")
    A("s_cmp_lg_u32 s63, 0")
    A("s_cbranch_scc1 L_jmod_end")
    A(f"s_cmp_ge_u32 s{S_T}, 18")
    A("s_cbranch_scc1 L_jmod_end")
    A("s_add_u32 s60, s60, 18")
    A("s_mov_b32 s63, 1")
    A("v_add_u32 v5, 8192, v5")
    wloads()
    A("s_branch L_jmod_pass")
    A.label("L_jmod_end")
    A("s_endpgm")
    return 156

def kernel0(A):
    name = "k0_kernel"; nwg = 256
    kernel_prologue(A, name, nwg)
    A(f"s_cmp_ge_u32 s2, {nwg}"); A("s_cbranch_scc1 L_k0_end")
    A("s_and_b32 s76, s2, 7")
    A("s_lshr_b32 s77, s2, 3")
    if TOUCH & 1:
        A(f"s_cmp_ge_u32 s{S_W}, 3"); A("s_cbranch_scc1 L_k0_nt")
        A("s_sub_u32 s28, 255, s2")
        A("s_mul_i32 s28, s28, 3")
        A(f"s_add_u32 s28, s28, s{S_W}")
        A("s_lshl_b32 s28, s28, 6")
        A(f"v_add_u32 v4, s28, v{V_LANE}")
        A("s_mov_b32 s29, 58255")
        A("v_mul_lo_u32 v5, v4, s29")
        A("v_lshrrev_b32 v5, 21, v5")
        A(f"v_mul_u32_u24 v5, {13824 - 36 * 128}, v5")
        A("v_lshl_add_u32 v4, v4, 7, v5")
        A("s_waitcnt lgkmcnt(0)")
        srd(A, SRD_F, P_WMOD, 1152 * 13824)
        A(f"buffer_load_dword v3, v4, s[{SRD_F}:{SRD_F+3}], 0 offen")
        A.label("L_k0_nt")
    A(f"s_sub_u32 s{S_T}, s2, 192")
    A("s_cmp_ge_u32 s77, 24"); A("s_cbranch_scc1 L_jln")
    A(f"s_sub_u32 s{S_T}, s77, 6")
    A("s_cmp_lt_u32 s77, 6"); A("s_cbranch_scc1 L_k0_m")
    A("s_cmp_lt_u32 s76, 6"); A("s_cbranch_scc1 L_jA")
    A("s_branch L_jkv")
    A.label("L_k0_m")
    A("s_cmp_ge_u32 s76, 6"); A("s_cbranch_scc1 L_k0_end")
    A(f"s_mul_i32 s{S_T}, s77, 6")
    A(f"s_add_u32 s{S_T}, s{S_T}, s76")
    v2 = job_mod(A)
    v1 = job_ln(A)
    gA = job_A(A)
    gk = job_kv(A)
    A.label("L_k0_end")
    A("s_endpgm")
    v = max(v1, v2, gA.vhi, gk.vhi)
    lds = max(gA.lds, gk.lds, 8 * 9216)
    return dict(name=name, grid=nwg, block=512, lds=lds, vgpr=v)
```

```python
class Asm:
    def __init__(self):
        self.L = []
    def __call__(self, s):
        self.L.append("    " + s)
    def label(self, l):
        self.L.append(l + ":")
    def raw(self, s):
        self.L.append(s)
    def text(self):
        return "\n".join(self.L) + "\n"

def rr(kind, base, n):
    return f"{kind}{base}" if n == 1 else f"{kind}[{base}:{base+n-1}]"

class LgkmTracker:
    def __init__(self, A):
        self.A = A; self.q = []
    def issue(self, tag):
        self.q.append(tag)
    def need(self, tag):
        if tag in self.q:
            i = len(self.q) - 1 - self.q[::-1].index(tag)
            n = len(self.q) - 1 - i
            n = min(n, 15)
            self.A(f"s_waitcnt lgkmcnt({n})")
            self.q = self.q[len(self.q) - n:] if n else []
    def clear(self):
        self.q = []

def gemm_loop(A, *, name, a, b, BK, NS, n, srdX, srdY, sizeX, sizeY, vX, vY, vRd, acc, xbuf, ybuf,
              s_k, s_cnt, s_m0base, lds_base=0, swap=False, xlds=False, vXd=None, vRdX=None, noload=False, nomfma=False, xhook=None):
    KK = BK // 32
    rowb = BK * 2
    yslot = 16 * b * rowb
    xslot = 64 * a * rowb if xlds else 0
    slot = yslot + xslot
    nY = len(vY)
    nXd = len(vXd) if xlds else 0
    def accr(i, f): return rr(acc[0], acc[1] + 4 * (i * b + f), 4)
    def xr(s, kk, i):
        if xlds: return rr(xbuf[0], xbuf[1] + 4 * ((kk % 2) * a + i), 4)
        return rr(xbuf[0], xbuf[1] + 4 * ((s * KK + kk) * a + i), 4)
    def yr(kk, f): return rr(ybuf[0], ybuf[1] + 4 * ((kk % 2) * b + f), 4)
    def loads(s):
        out = []
        for i in range(nY):
            ins = []
            if i % 4 == 0:
                ins.append(f"s_add_u32 m0, s{s_m0base}, {lds_base + s * slot + i * 1024}")
                ins.append("s_nop 0")
            ins.append(f"buffer_load_dwordx4 v{vY[i]}, s[{srdY}:{srdY+3}], s{s_k} offen offset:{(i % 4) * 1024} lds")
            out.append(ins)
        if xlds:
            for i in range(nXd):
                ins = []
                if i % 4 == 0:
                    ins.append(f"s_add_u32 m0, s{s_m0base + 1}, {lds_base + s * slot + yslot + i * 1024}")
                    ins.append("s_nop 0")
                ins.append(f"buffer_load_dwordx4 v{vXd[i]}, s[{srdX}:{srdX+3}], s{s_k} offen offset:{(i % 4) * 1024} lds")
                out.append(ins)
            return out, []
        xs = []
        for kk in range(KK):
            for i in range(a):
                xs.append([f"buffer_load_dwordx4 {xr(s, kk, i)}, v{vX[i]}, s[{srdX}:{srdX+3}], s{s_k} offen offset:{kk * 64}"])
        early = xs[:-a]; late = xs[-a:]
        mix = []
        ia = ib = 0
        while ia < len(out) or ib < len(early):
            if ib < len(early): mix.append(early[ib]); ib += 1
            if ia < len(out): mix.append(out[ia]); ia += 1
        return mix, late
    ops = nY + (nXd if xlds else a * KK)
    for s in range(NS - 1):
        m, l = loads(s)
        for ins in m + l:
            for x in ins: A(x)
        A(f"s_add_u32 s{s_k}, s{s_k}, {rowb}")
    for i in range(a * b * 4):
        A(f"v_accvgpr_write_b32 a{acc[1] + i}, 0" if acc[0] == "a" else f"v_mov_b32 v{acc[1] + i}, 0")
    def zero(kind, base, cnt):
        for i in range(cnt):
            A(f"v_accvgpr_write_b32 a{base + i}, 0" if kind == "a" else f"v_mov_b32 v{base + i}, 0")
    zero(ybuf[0], ybuf[1] + 4 * b, 4 * b)
    if xlds: zero(xbuf[0], xbuf[1] + 4 * a, 4 * a)
    else: zero(xbuf[0], xbuf[1] + 4 * (((NS - 1) * KK + KK - 1) * a), 4 * a)
    A(f"s_mov_b32 s{s_cnt}, 0")
    A.label(f"L_{name}_loop")
    T = LgkmTracker(A)
    for p in range(NS):
        A(f"s_waitcnt vmcnt({(NS - 2) * ops}) lgkmcnt(0)")
        A("s_barrier")
        if p == 0:
            A(f"s_cmp_lg_u32 s{s_cnt}, 0")
            A(f"s_cbranch_scc1 L_{name}_ns")
            A("s_memtime s[74:75]")
            A("s_waitcnt lgkmcnt(0)")
            A.label(f"L_{name}_ns")
        T.clear()
        A(f"s_cmp_gt_u32 s{s_cnt}, {n - NS}")
        A(f"s_cselect_b32 s{srdX + 2}, 0, s{sizeX}")
        A(f"s_cselect_b32 s{srdY + 2}, 0, s{sizeY}")
        sl = (p - 1) % NS
        mix, late = loads(sl)
        if noload: mix, late = [], []
        nm = KK * a * b
        allld = mix + late
        pos = {}
        for j, ins in enumerate(allld):
            q = (j * nm) // len(allld) if allld else 0
            if j >= len(mix): q = max(q, a * b)
            pos.setdefault(q, []).append(ins)
        gi = 0
        for ph in range(KK):
            mkk = (KK - 1) if ph == 0 else ph - 1
            xs = sl if ph == 0 else p
            reads = []
            if xlds:
                for i in range(a):
                    reads.append((("x", ph, i), f"ds_read_b128 {xr(0, ph, i)}, v{vRdX[p][ph]} offset:{i * 16 * rowb}"))
            for f in range(b):
                reads.append((("y", ph, f), f"ds_read_b128 {yr(ph, f)}, v{vRd[p][ph]} offset:{f * 16 * rowb}"))
            nmf = a * b
            per = -(-len(reads) // max(1, (nmf + 1) // 2))
            ri = 0
            if xhook: xhook(A, xs, mkk, p, ph)
            for f in range(b):
                for i in range(a):
                    if ph > 0:
                        T.need(("y", mkk, f))
                        if xlds: T.need(("x", mkk, i))
                    X = xr(xs, mkk, i); Y = yr(mkk, f)
                    if not nomfma:
                        if swap: A(f"v_mfma_f32_16x16x32_bf16 {accr(i, f)}, {X}, {Y}, {accr(i, f)}")
                        else: A(f"v_mfma_f32_16x16x32_bf16 {accr(i, f)}, {Y}, {X}, {accr(i, f)}")
                    for _ in range(per):
                        if ri < len(reads):
                            A(reads[ri][1]); T.issue(reads[ri][0]); ri += 1
                    for ins in pos.get(gi, []):
                        for x in ins: A(x)
                    gi += 1
            if ph == 0 and p == n % NS:
                A(f"s_cmp_eq_u32 s{s_cnt}, {n}")
                A(f"s_cbranch_scc1 L_{name}_done")
        A(f"s_add_u32 s{s_k}, s{s_k}, {rowb}")
        A(f"s_add_u32 s{s_cnt}, s{s_cnt}, 1")
    A(f"s_branch L_{name}_loop")
    A.label(f"L_{name}_done")

HEAD = '''.amdgcn_target "amdgcn-amd-amdhsa--gfx950"
.text
'''
def kernel_head(A, name):
    A.raw(f".globl {name}\n.p2align 8\n.type {name},@function\n{name}:")
def kernel_desc(name, vgpr, agpr, sgpr=102):
    acc = (vgpr + 3) // 4 * 4
    return f'''.amdhsa_kernel {name}
  .amdhsa_next_free_vgpr {acc + agpr}
  .amdhsa_next_free_sgpr {sgpr}
  .amdhsa_accum_offset {acc}
  .amdhsa_group_segment_fixed_size 0
  .amdhsa_kernarg_size 96
  .amdhsa_user_sgpr_count 2
  .amdhsa_user_sgpr_kernarg_segment_ptr 1
  .amdhsa_system_sgpr_workgroup_id_x 1
.end_amdhsa_kernel
'''

def bench_gemm(a, b, BK, NS, M, N, K, xr_tiles, xlds=False, noload=False, nomfma=False, offX=0, offY=8 << 20, offC=16 << 20):
    TM, TN = 64 * a, 16 * b
    mt, nt = M // TM, N // TN
    nwg = mt * nt
    per_xcd = nwg // 8
    xc_tiles = per_xcd // xr_tiles
    gr = mt // xr_tiles
    assert gr * (nt // xc_tiles) == 8, (gr, nt, xc_tiles)
    n = K // BK; KK = BK // 32; rowb = BK * 2
    ld = K * 2
    rows_per = 1024 // rowb
    lanes_per_row = rowb // 16
    nYtot = 16 * b // rows_per
    assert nYtot % 4 == 0, "uneven DMA split"
    nY = nYtot // 4
    nXd = (64 * a // rows_per) // 4
    slot = 16 * b * rowb + (64 * a * rowb if xlds else 0)
    lds = NS * slot
    A = Asm()
    name = "standalone__pixart__diffusion_kernel"
    A.raw(f"; @launch grid=({nwg},1,1) block=(256,1,1) lds={lds}")
    A.raw(HEAD)
    kernel_head(A, name)
    A(f"s_cmp_ge_u32 s2, {nwg}")
    A("s_cbranch_scc1 L_end")
    A("s_load_dwordx2 s[4:5], s[0:1], 88")
    A("s_memrealtime s[60:61]")
    A("s_memtime s[62:63]")
    A("s_and_b32 s20, s2, 7")
    A("s_lshr_b32 s21, s2, 3")
    A(f"s_and_b32 s22, s20, {gr - 1}")
    A(f"s_lshr_b32 s23, s20, {gr.bit_length() - 1}")
    A(f"s_and_b32 s24, s21, {xr_tiles - 1}")
    A(f"s_lshr_b32 s25, s21, {xr_tiles.bit_length() - 1}")
    A(f"s_mul_i32 s22, s22, {xr_tiles}")
    A("s_add_u32 s22, s22, s24")
    A(f"s_mul_i32 s23, s23, {xc_tiles}")
    A("s_add_u32 s23, s23, s25")
    A("v_lshrrev_b32 v1, 6, v0")
    A("v_and_b32 v2, 63, v0")
    A("v_readfirstlane_b32 s26, v1")
    A("v_and_b32 v3, 15, v2")
    A("v_lshrrev_b32 v4, 4, v2")
    A("s_waitcnt lgkmcnt(0)")
    def srd(d, off, size):
        A(f"s_add_u32 s{d}, s4, {off}")
        A(f"s_addc_u32 s{d+1}, s5, 0")
        A(f"s_mov_b32 s{d+2}, {size}")
        A(f"s_mov_b32 s{d+3}, 0x20000")
    srd(8, offX, M * ld); srd(12, offY, N * ld); srd(16, offC, M * N * 2)
    A(f"s_mov_b32 s28, {M * ld}"); A(f"s_mov_b32 s29, {N * ld}")
    v = 8
    def alloc(k):
        nonlocal v
        r = list(range(v, v + k)); v += k; return r
    vX = alloc(a); vY = alloc(nY); vXd = alloc(nXd) if xlds else None
    vRd = [alloc(KK) for _ in range(NS)]
    vRdX = [alloc(KK) for _ in range(NS)] if xlds else None
    A(f"s_mul_i32 s30, s22, {TM}")
    A(f"s_mul_i32 s31, s26, {16 * a}")
    A("s_add_u32 s30, s30, s31")
    A("v_add_u32 v5, s30, v3")
    A(f"s_mov_b32 s32, {ld}")
    A("v_mul_lo_u32 v5, v5, s32")
    A(f"v_lshl_add_u32 v{vX[0]}, v4, 4, v5")
    for i in range(1, a): A(f"v_add_u32 v{vX[i]}, {16 * ld}, v{vX[i-1]}")
    def dma_voff(vs, s_tile_row0, cnt):
        sh = lanes_per_row.bit_length() - 1
        A(f"v_lshrrev_b32 v5, {sh}, v2")
        A(f"s_mul_i32 s33, s26, {cnt * rows_per}")
        A("v_add_u32 v5, s33, v5")
        A(f"v_and_b32 v6, {lanes_per_row - 1}, v2")
        for i in range(cnt):
            A(f"v_add_u32 v7, {i * rows_per}, v5")
            if BK == 128: A("v_and_b32 v1, 15, v7")
            else:
                A("v_bfe_u32 v1, v7, 1, 3")
            A("v_xor_b32 v1, v1, v6")
            A(f"v_add_u32 v7, s{s_tile_row0}, v7")
            A("v_mul_lo_u32 v7, v7, s32")
            A("v_lshl_add_u32 v7, v1, 4, v7")
            A(f"v_subrev_u32 v{vs[i]}, {(i % 4) * 1024}, v7")
    A(f"s_mul_i32 s34, s23, {TN}")
    dma_voff(vY, 34, nY)
    A(f"s_mul_i32 s36, s26, {nY * 1024}")
    if xlds:
        A(f"s_mul_i32 s35, s22, {TM}")
        dma_voff(vXd, 35, nXd)
        A(f"s_mul_i32 s37, s26, {nXd * 1024}")
    for kk in range(KK):
        if BK == 128:
            A(f"v_or_b32 v5, {4 * kk}, v4")
            A("v_xor_b32 v5, v5, v3")
        else:
            A(f"v_or_b32 v5, {4 * kk}, v4")
            A("v_lshrrev_b32 v6, 1, v3")
            A("v_xor_b32 v5, v5, v6")
        A("v_lshlrev_b32 v5, 4, v5")
        A(f"v_lshl_add_u32 v5, v3, {rowb.bit_length() - 1}, v5")
        for s in range(NS):
            A(f"v_add_u32 v{vRd[s][kk]}, {s * slot}, v5")
            if xlds:
                A(f"s_mul_i32 s33, s26, {16 * a * rowb}")
                A(f"s_add_u32 s33, s33, {s * slot + 16 * b * rowb}")
                A(f"v_add_u32 v{vRdX[s][kk]}, s33, v5")
    v = (v + 3) // 4 * 4
    ybuf = ("v", v); v += 8 * b
    accn = a * b * 4
    xn = 8 * a if xlds else NS * KK * a * 4
    acc = ("v", v); v += accn
    xbuf = ("a", 0)
    assert v <= 256 and xn <= 256
    A("s_mov_b32 s40, 0")
    A("s_memtime s[64:65]")
    A("s_waitcnt lgkmcnt(0)")
    gemm_loop(A, name="g", a=a, b=b, BK=BK, NS=NS, n=n, srdX=8, srdY=12, sizeX=28, sizeY=29, vX=vX, vY=vY, vRd=vRd,
              acc=acc, xbuf=xbuf, ybuf=ybuf, s_k=40, s_cnt=41, s_m0base=36, xlds=xlds, vXd=vXd, vRdX=vRdX, noload=noload, nomfma=nomfma)
    A("s_memtime s[66:67]")
    A("s_waitcnt lgkmcnt(0)")
    A("s_nop 7"); A("s_nop 7")
    A("v_add_u32 v5, s30, v3")
    A(f"s_mov_b32 s32, {N * 2}")
    A("v_mul_lo_u32 v5, v5, s32")
    A("v_lshl_add_u32 v5, v4, 3, v5")
    A("s_lshl_b32 s34, s34, 1")
    A("v_add_u32 v5, s34, v5")
    for i in range(a):
        for f in range(b):
            r0 = acc[1] + 4 * (i * b + f)
            A(f"v_cvt_pk_bf16_f32 v{r0}, v{r0}, v{r0+1}")
            A(f"v_cvt_pk_bf16_f32 v{r0+1}, v{r0+2}, v{r0+3}")
            A(f"buffer_store_dwordx2 v[{r0}:{r0+1}], v5, s[16:19], 0 offen offset:{f * 32}")
        A(f"v_add_u32 v5, {16 * N * 2}, v5")
    A("s_memtime s[68:69]")
    A("s_waitcnt vmcnt(0) lgkmcnt(0)")
    A("s_memtime s[70:71]")
    A("s_memrealtime s[72:73]")
    A("s_waitcnt lgkmcnt(0)")
    A("s_add_u32 s44, s4, 0x4000000")
    A("s_addc_u32 s45, s5, 0")
    A("s_mov_b32 s46, 0x100000")
    A("s_mov_b32 s47, 0x20000")
    A("s_lshl_b32 s50, s2, 2")
    A("s_add_u32 s50, s50, s26")
    A("s_lshl_b32 s50, s50, 5")
    A("v_mov_b32 v1, s50")
    A("s_sub_u32 s64, s64, s62")
    A("s_sub_u32 s66, s66, s62")
    A("s_sub_u32 s68, s68, s62")
    A("s_sub_u32 s70, s70, s62")
    A("s_sub_u32 s74, s74, s62")
    for j, r in enumerate((60, 72, 64, 74, 66, 68, 70)):
        A(f"v_mov_b32 v2, s{r}")
        A(f"buffer_store_dword v2, v1, s[44:47], 0 offen offset:{4*j}")
    A.label("L_end")
    A("s_endpgm")
    A.raw('.section .rodata,"a"\n.p2align 6')
    A.raw(kernel_desc(name, v, xn))
    return A.text()

if __name__ == "__main__":
    import sys
    cfgs = {
        "d128_3": dict(a=2, b=9, BK=128, NS=3, M=2048, N=2304, K=1152, xr_tiles=8),
        "d128_4": dict(a=2, b=9, BK=128, NS=4, M=2048, N=2304, K=1152, xr_tiles=8),
        "d128_4nm": dict(a=2, b=9, BK=128, NS=4, M=2048, N=2304, K=1152, xr_tiles=8, nomfma=True),
        "d128_4nl": dict(a=2, b=9, BK=128, NS=4, M=2048, N=2304, K=1152, xr_tiles=8, noload=True),
        "l128_2": dict(a=2, b=9, BK=128, NS=2, M=2048, N=2304, K=1152, xr_tiles=8, xlds=True),
        "d64_8": dict(a=2, b=8, BK=64, NS=8, M=2048, N=2048, K=1152, xr_tiles=8),
        "d64_6": dict(a=2, b=8, BK=64, NS=6, M=2048, N=2048, K=1152, xr_tiles=8),
        "l64_5": dict(a=2, b=8, BK=64, NS=5, M=2048, N=2048, K=1152, xr_tiles=8, xlds=True),
        "l64_5nm": dict(a=2, b=8, BK=64, NS=5, M=2048, N=2048, K=1152, xr_tiles=8, xlds=True, nomfma=True),
        "d128b8_4": dict(a=2, b=8, BK=128, NS=4, M=2048, N=2048, K=1152, xr_tiles=8),
    }
    for k, c in cfgs.items():
        open(f"bg_{k}.s", "w").write(bench_gemm(**c))
    import json; json.dump(cfgs, open("bg_cfgs.json", "w"))
```

```python
from gemmgen import Asm, HEAD, kernel_head, kernel_desc
import json
def gen(nreg_x, xshare, rot, kb=512, depth=24, nwg=256, xrot=0, flag='', skew=0, pf=0, reg=0, spw=0, sdepth=12, sx=1):
    nwaves = 4; iters = kb // nwaves
    A = Asm(); name = "standalone__pixart__diffusion_kernel"
    A.raw(f"; @launch grid=({nwg},1,1) block=({256 + 64 * spw},1,1) lds=65536")
    A.raw(HEAD); kernel_head(A, name)
    A(f"s_cmp_ge_u32 s2, {nwg}"); A("s_cbranch_scc1 L_end")
    A("s_load_dwordx2 s[4:5], s[0:1], 88")
    A("v_lshrrev_b32 v1, 6, v0"); A("v_and_b32 v2, 63, v0"); A("v_readfirstlane_b32 s26, v1")
    A("s_waitcnt lgkmcnt(0)")
    A("s_mov_b32 s8, s4"); A("s_mov_b32 s9, s5"); A(f"s_mov_b32 s10, {128<<20}"); A("s_mov_b32 s11, 0x20000")
    rsize = kb * 1024
    sh = 32 // nreg_x
    A("s_and_b32 s20, s2, 7"); A("s_lshr_b32 s21, s2, 3")
    A(f"s_and_b32 s22, s21, {nreg_x-1}")
    A(f"s_lshr_b32 s23, s21, {nreg_x.bit_length()-1}")
    A(f"s_lshr_b32 s24, s20, {xshare.bit_length()-1}")
    A(f"s_and_b32 s25, s20, {xshare-1}")
    A(f"s_mul_i32 s24, s24, {nreg_x}"); A("s_add_u32 s24, s24, s22"); A(f"s_mul_i32 s24, s24, {rsize}")
    A("v_lshlrev_b32 v3, 4, v2"); A("s_lshl_b32 s27, s26, 10"); A("s_add_u32 s24, s24, s27"); A("v_add_u32 v3, s24, v3")
    A("s_lshl_b32 s28, s26, 12"); A("s_mov_b32 m0, s28")
    A(f"s_mul_i32 s40, s23, {rsize // sh if rot else 0}")
    if xrot:
        A(f"s_mul_i32 s42, s25, {rsize // sh // xshare if rot else rsize // xshare}"); A("s_add_u32 s40, s40, s42")
    if skew:
        A(f"s_mul_i32 s42, s23, {skew * 1024}"); A("s_add_u32 s40, s40, s42")
    nl = 256 // sh
    A(f"v_min_u32 v5, {nl - 1}, v2"); A(f"s_mul_i32 s42, s23, {nl}"); A("v_add_u32 v5, s42, v5"); A("v_lshlrev_b32 v5, 7, v5"); A("v_add_u32 v5, s24, v5")
    A("s_mov_b32 s41, 0")
    A("s_barrier")
    if spw:
        A("s_cmp_lt_u32 s26, 4"); A("s_cbranch_scc1 L_main")
        A("s_sub_u32 s24, s24, s27")
        A(f"s_mul_i32 s42, s23, {spw}"); A("s_add_u32 s42, s42, s26"); A("s_sub_u32 s42, s42, 4"); A("s_lshl_b32 s42, s42, 7")
        A("s_add_u32 s24, s24, s42"); A("s_add_u32 s24, s24, 32768")
        A("s_add_u32 s30, s4, s24"); A("s_addc_u32 s31, s5, 0")
        stride = sh * spw * 128
        nl_ = (rsize - 32768) // stride
        A.label("L_sp")
        for u in range(8):
            if sx == 1: A(f"s_load_dword s{64 + u}, s[30:31], {u * stride}")
            else: A(f"s_load_dwordx16 s[64:79], s[30:31], {u * stride}")
            A(f"s_waitcnt lgkmcnt({sdepth})")
        A(f"s_add_u32 s30, s30, {8 * stride}"); A("s_addc_u32 s31, s31, 0")
        A("s_add_u32 s41, s41, 8"); A(f"s_cmp_lt_u32 s41, {nl_ - 7}"); A("s_cbranch_scc1 L_sp")
        A("s_endpgm")
        A.label("L_main")
    A("s_memtime s[62:63]"); A("s_waitcnt lgkmcnt(0)")
    U = 8
    A.label("L_loop")
    for u in range(U):
        if reg: A(f"buffer_load_dwordx4 v[{8+4*u}:{11+4*u}], v3, s[8:11], s40 offen {flag}")
        else: A(f"buffer_load_dwordx4 v3, s[8:11], s40 offen {flag} lds")
        if pf and u == 0:
            A(f"s_add_u32 s43, s40, {pf * 32768}")
            A("s_cmp_lg_u32 s26, 0"); A("s_cbranch_scc1 L_nopf")
            A("buffer_load_dword v6, v5, s[8:11], s43 offen")
            A.label("L_nopf")
        A(f"s_add_u32 s40, s40, 4096"); A(f"s_and_b32 s40, s40, {rsize-1}")
        A(f"s_waitcnt vmcnt({depth})")
    A(f"s_add_u32 s41, s41, {U}"); A(f"s_cmp_lt_u32 s41, {iters}"); A("s_cbranch_scc1 L_loop")
    A("s_waitcnt vmcnt(0)")
    A("s_memtime s[64:65]"); A("s_waitcnt lgkmcnt(0)")
    A("s_add_u32 s44, s4, 0x8000000"); A("s_addc_u32 s45, s5, 0"); A("s_mov_b32 s46, 0x100000"); A("s_mov_b32 s47, 0x20000")
    A(f"s_mul_i32 s50, s2, {nwaves}"); A("s_add_u32 s50, s50, s26"); A("s_lshl_b32 s50, s50, 2")
    A("v_mov_b32 v1, s50"); A("s_sub_u32 s64, s64, s62"); A("v_mov_b32 v2, s64")
    A("buffer_store_dword v2, v1, s[44:47], 0 offen")
    A.label("L_end"); A("s_endpgm")
    A.raw('.section .rodata,"a"\n.p2align 6'); A.raw(kernel_desc(name, 64, 0))
    return A.text()
cf = {
 "r4": dict(nreg_x=4, xshare=2, rot=0),
 "r4_sp1": dict(nreg_x=4, xshare=2, rot=0, spw=1),
 "r4_sp2": dict(nreg_x=4, xshare=2, rot=0, spw=2),
 "r4_sp4": dict(nreg_x=4, xshare=2, rot=0, spw=4),
 "r4_sp8": dict(nreg_x=4, xshare=2, rot=0, spw=8),
 "r4_sp2_d15": dict(nreg_x=4, xshare=2, rot=0, spw=2, sdepth=15),
 "r8": dict(nreg_x=8, xshare=2, rot=0),
 "r8_sp2": dict(nreg_x=8, xshare=2, rot=0, spw=2, sdepth=15),
 "r8_sp4": dict(nreg_x=8, xshare=2, rot=0, spw=4, sdepth=15),
 "r8_sp8": dict(nreg_x=8, xshare=2, rot=0, spw=8, sdepth=15),
}
for k, c in cf.items(): open(f"b2_{k}.s", "w").write(gen(**c))
json.dump(cf, open("b2_cfgs.json", "w"))
```
